```python
import torch

def _softmax(x, axis=-1):
    return torch.softmax(x, dim=axis)
def _gelu(x):
    return torch.nn.functional.gelu(x, approximate="tanh")
def _silu(x):
    return torch.nn.functional.silu(x)
def _sigmoid(x):
    return torch.sigmoid(x)
def _layernorm(x, axis=-1, eps=1e-5):
    m = x.mean(dim=axis, keepdim=True)
    v = x.var(dim=axis, keepdim=True, unbiased=False)
    return (x - m) / torch.sqrt(v + eps)
def _scatter_add(tgt, idx, src, axis=0):
    return tgt.clone().index_add_(axis, idx, src)
def _segment_sum(src, seg, n):
    out = torch.zeros((n,) + src.shape[1:], dtype=src.dtype)
    return out.index_add_(0, seg, src)
def _pad(x, pw):
    flat = tuple(v for pair in reversed(pw) for v in pair)
    return torch.nn.functional.pad(x, flat)

kernel_name = 'gather_scatter__edge_featured_mpnn_gatedgcn__graph'

def setup_inputs():

    _w = (lambda a: (lambda t: t.to(torch.bfloat16) if t.is_floating_point() else t)(torch.as_tensor(a)))
    N, deg, D, De = 10000, 16, 128, max(16, 1)
    E = N * deg
    return {
        "x": _w((lambda *s: torch.randn(*s, dtype=torch.bfloat16) * 0.4)(N, D)),
        "e_attr": _w((lambda *s: torch.randn(*s, dtype=torch.bfloat16) * 0.4)(E, De)),
        "src": _w((lambda lo, hi, *s: torch.randint(lo, hi, s))(0, N, E).to(torch.int64)),
        "dst": _w((lambda lo, hi, *s: torch.randint(lo, hi, s))(0, N, E).to(torch.int64)),
        "w_a": _w((lambda *s: torch.randn(*s, dtype=torch.bfloat16) * 0.4)(D, D)),
        "w_b": _w((lambda *s: torch.randn(*s, dtype=torch.bfloat16) * 0.4)(D, D)),
        "w_c": _w((lambda *s: torch.randn(*s, dtype=torch.bfloat16) * 0.4)(De, D)),
        "w_u": _w((lambda *s: torch.randn(*s, dtype=torch.bfloat16) * 0.05)(D, D)),
        "w_v": _w((lambda *s: torch.randn(*s, dtype=torch.bfloat16) * 0.05)(D, D)),
    }

def reference(x, e_attr, src, dst, w_a, w_b, w_c, w_u, w_v):
    N, D = x.shape
    hv = x @ w_v
    g = x[dst] @ w_a + x[src] @ w_b + e_attr @ w_c
    eta = _sigmoid(g)
    denom = _segment_sum(eta, dst, N) + 1e-6
    eta_n = eta / denom[dst]
    agg = _segment_sum(eta_n * hv[src], dst, N)
    z = x @ w_u + agg
    relu_z = torch.where(z > 0, z, 0 * z)
    return x + relu_z
```

```python
import re

TRANS = ('v_exp_f32', 'v_log_f32', 'v_rcp_f32', 'v_rsq_f32', 'v_sqrt_f32', 'v_sin_f32', 'v_cos_f32',
         'v_rcp_iflag_f32', 'v_exp_f16', 'v_rcp_f16')


def regs_of(tok):
    tok = tok.strip()
    neg = tok.lstrip('-')
    if neg.startswith('abs(') and neg.endswith(')'):
        neg = neg[4:-1]
    if neg.startswith('|') and neg.endswith('|'):
        neg = neg[1:-1]
    m = re.fullmatch(r'([vsa])(\d+)', neg)
    if m:
        return {(m.group(1), int(m.group(2)))}
    m = re.fullmatch(r'([vsa])\[(\d+):(\d+)\]', neg)
    if m:
        return {(m.group(1), i) for i in range(int(m.group(2)), int(m.group(3)) + 1)}
    if neg in ('vcc', 'vcc_lo', 'vcc_hi'):
        return {('vcc', 0)}
    if neg in ('exec', 'exec_lo', 'exec_hi'):
        return {('exec', 0)}
    if neg == 'm0':
        return {('m0', 0)}
    return set()


class Ins:
    def __init__(self, text):
        self.text = text
        t = text.split(';')[0].strip()
        self.is_label = t.endswith(':')
        self.defs, self.uses = set(), set()
        self.kind = 'other'
        self.srcC = set()
        self.srcAB = set()
        self.passes = 0
        self.ws = 1
        if self.is_label or not t:
            self.kind = 'label'
            self.op = ''
            self.ws = 0
            return
        if t.startswith('.'):
            self.kind = 'directive'
            self.op = ''
            self.ws = 0
            return
        parts = t.split(None, 1)
        op = parts[0]
        self.op = op
        rest = parts[1] if len(parts) > 1 else ''
        ops = []
        depth = 0
        cur = ''
        for ch in rest:
            if ch == '[':
                depth += 1
            if ch == ']':
                depth -= 1
            if ch == ',' and depth == 0:
                ops.append(cur.strip())
                cur = ''
            else:
                cur += ch
        if cur.strip():
            ops.append(cur.strip())
        mods = ''
        if ops:
            sp = ops[-1].split(None, 1)
            ops[-1] = sp[0]
            mods = sp[1] if len(sp) > 1 else ''
        self.ops, self.mods = ops, mods
        R = [regs_of(o) for o in ops]
        base = re.sub(r'_(e32|e64|dpp|sdwa)$', '', op)
        self.base = base
        self.dpp = op.endswith('_dpp') or 'row_' in mods or 'quad_perm' in mods or 'wave_' in mods
        if op == 's_nop':
            self.kind = 'nop'
            self.ws = int(ops[0], 0) + 1
        elif op.startswith('v_mfma') or op.startswith('v_smfmac'):
            self.kind = 'mfma'
            self.passes = 8 if '32x32' in op else (4 if '16x16' in op else 2)
            self.defs = R[0]
            self.srcAB = R[1] | R[2]
            self.srcC = R[3] if op.startswith('v_mfma') else R[0]
            if op.startswith('v_smfmac'):
                self.srcAB |= R[3]
            self.uses = self.srcAB | self.srcC
        elif op.startswith('v_'):
            self.kind = 'valu'
            if base.startswith('v_cmp'):
                self.defs = R[0]
                self.uses = set().union(*R[1:])
            elif base in ('v_readfirstlane_b32', 'v_readlane_b32'):
                self.defs = R[0]
                self.uses = set().union(*R[1:])
            elif base.startswith('v_permlane') and 'swap' in base:
                self.defs = R[0] | R[1]
                self.uses = R[0] | R[1]
            elif base in ('v_add_co_u32', 'v_sub_co_u32', 'v_addc_co_u32', 'v_subb_co_u32'):
                self.defs = R[0] | R[1]
                self.uses = set().union(*R[2:])
            else:
                self.defs = R[0]
                self.uses = set().union(*R[1:]) if len(R) > 1 else set()
                if base in ('v_fmac_f32', 'v_dot2c_f32_bf16', 'v_writelane_b32') or self.dpp:
                    self.uses |= R[0]
                if base == 'v_cndmask_b32' and len(ops) == 3:
                    self.uses |= {('vcc', 0)}
            self.trans = base in TRANS
        elif op.startswith('ds_'):
            self.kind = 'ds'
            if op.startswith('ds_read') or 'rtn' in op or 'permute' in op or 'swizzle' in op:
                self.defs = R[0]
                self.uses = set().union(*R[1:])
            else:
                self.uses = set().union(*R)
        elif op.startswith('buffer_') or op.startswith('global_'):
            self.kind = 'vmem'
            lds = re.search(r'\blds\b', mods) is not None or '_lds_' in op
            self.lds = lds
            store = 'store' in op or ('atomic' in op)
            if op in ('buffer_wbl2', 'buffer_inv'):
                pass
            elif lds or store:
                self.uses = set().union(*R)
                if lds:
                    self.uses |= {('m0', 0)}
            else:
                self.defs = R[0]
                self.uses = set().union(*R[1:])
            self.wide_store = store and ('x4' in op or 'x3' in op)
            self.store_data = set()
            if store:
                self.store_data = R[0] if op.startswith('buffer_') else R[1]
        elif op.startswith('s_'):
            self.kind = 'salu'
            if op.startswith('s_load') or op.startswith('s_buffer_load'):
                self.kind = 'smem'
                self.defs = R[0]
                self.uses = set().union(*R[1:])
            elif op.startswith('s_cmp') or op.startswith('s_bitcmp'):
                self.uses = set().union(*R)
            elif op.startswith('s_cbranch') or op in ('s_branch', 's_barrier', 's_waitcnt', 's_endpgm', 's_setprio', 's_sleep'):
                pass
            elif op in ('s_memtime', 's_memrealtime'):
                self.kind = 'smem'
                self.defs = R[0]
            elif 'saveexec' in op:
                self.defs = R[0] | {('exec', 0)}
                self.uses = R[1] | {('exec', 0)}
            else:
                self.defs = R[0] if R else set()
                self.uses = set().union(*R[1:]) if len(R) > 1 else set()


def vg(s):
    return {r for r in s if r[0] in ('v', 'a')}


def sg(s):
    return {r for r in s if r[0] in ('s', 'vcc')}


def need(p, c):
    n = 0
    if p.kind == 'valu':
        pv = vg(p.defs)
        ps = sg(p.defs)
        if c.kind == 'mfma' and pv & c.uses:
            n = max(n, 2)
        if c.kind == 'valu':
            if pv & c.uses:
                if getattr(p, 'trans', False) and not getattr(c, 'trans', False):
                    n = max(n, 1)
                if c.dpp:
                    n = max(n, 2)
                if c.base.startswith('v_permlane'):
                    n = max(n, 2)
                if c.base in ('v_readlane_b32', 'v_readfirstlane_b32'):
                    n = max(n, 1)
                if 'sdwa' in p.op or 'op_sel' in getattr(p, 'mods', ''):
                    n = max(n, 1)
            if ps & c.uses:
                n = max(n, 4 if c.base in ('v_readlane_b32', 'v_writelane_b32') else 2)
        if c.kind == 'vmem' and ps & c.uses:
            n = max(n, 5)
        if c.kind in ('salu', 'smem') and ps & c.uses:
            n = max(n, 1)
        if getattr(p, 'trans', False) and c.kind in ('ds', 'vmem') and pv & c.uses:
            n = max(n, 1)
    if p.kind == 'mfma':
        P = p.passes
        full = {2: 5, 4: 8, 8: 12}[P]
        if c.kind == 'mfma':
            if p.defs & c.srcAB:
                n = max(n, full)
            if p.defs & c.srcC:
                if p.defs == c.srcC and p.passes == c.passes:
                    n = max(n, 2 if P == 2 else 0)
                else:
                    n = max(n, {2: 4, 4: 6, 8: 10}[P])
            elif p.defs & c.defs:
                n = max(n, full)
        elif c.kind in ('valu', 'ds', 'vmem'):
            if p.defs & (c.uses | c.defs):
                n = max(n, full)
            if c.kind == 'valu' and p.srcC & c.defs:
                n = max(n, {2: 1, 4: 3, 8: 7}[P])
            if c.kind in ('ds', 'vmem') and (p.srcAB | p.srcC) & c.defs:
                n = max(n, 4)
    if p.kind == 'salu' and ('m0', 0) in p.defs and c.kind == 'vmem' and getattr(c, 'lds', False):
        n = max(n, 1)
    if p.kind == 'vmem' and getattr(p, 'wide_store', False):
        if p.store_data & c.defs:
            n = max(n, 2)
    if p.kind == 'ds' and p.op in ('ds_write_b128', 'ds_write_b96') and c.kind == 'valu':
        data = regs_of(p.ops[1])
        if data & c.defs:
            n = max(n, 2)
    return n


WINDOW = 24


class Asm:
    def __init__(self):
        self.ins = []

    def __call__(self, *lines):
        for l in lines:
            if isinstance(l, (list, tuple)):
                self(*l)
            else:
                for x in l.split('\n'):
                    if x.strip():
                        self.ins.append(Ins(x.strip()))

    def label(self, name):
        self.ins.append(Ins(name + ':'))

    def _gap(self, hist, c):
        dist = 0
        extra = 0
        for p in reversed(hist):
            if dist >= WINDOW:
                break
            if p.kind in ('label', 'directive'):
                continue
            nd = need(p, c)
            if nd > dist:
                extra = max(extra, nd - dist)
            dist += p.ws
        return extra

    def finalize(self):
        out = []
        for c in self.ins:
            if c.kind not in ('label', 'directive', 'nop'):
                extra = self._gap(out, c)
                while extra > 0:
                    k = min(extra, 16)
                    out.append(Ins(f's_nop {k - 1}'))
                    extra -= k
            out.append(c)
        labels = {i.text[:-1].strip(): n for n, i in enumerate(out) if i.is_label}
        problems = []
        for n, i in enumerate(out):
            if i.kind == 'salu' and (i.op.startswith('s_cbranch') or i.op == 's_branch'):
                tgt = i.ops[0]
                if tgt not in labels:
                    problems.append(f'unknown label {tgt}')
                    continue
                hist = out[max(0, n - 40):n + 1]
                j = labels[tgt]
                seq = list(hist)
                dist = 0
                while j < len(out) and dist < WINDOW:
                    c = out[j]
                    if c.kind not in ('label', 'directive', 'nop'):
                        if self._gap(seq, c) > 0:
                            problems.append(f'hazard across branch at "{i.text}" -> "{c.text}"')
                    seq.append(c)
                    dist += c.ws
                    if c.kind == 'salu' and c.op in ('s_branch', 's_endpgm'):
                        break
                    j += 1
        if problems:
            raise RuntimeError('\n'.join(problems))
        self.out = out
        return '\n'.join((i.text if i.is_label else '    ' + i.text) for i in out)

    def stats(self):
        from collections import Counter
        return Counter(i.kind for i in self.out)
```

```python
N = 10000
E = 160000
NB = 512
NG = 128
NC = 128
CH = 1250
TQ = N * 128

WS_TBL = 0
WS_ES = 4 * TQ
WS_REC = WS_ES + E * 32
WS_OFF = WS_REC + E * 4
OFF_BYTES = (NB + 1) * 256
WS_FRA = (WS_OFF + OFF_BYTES + 1023) // 1024 * 1024
WS_FRU = WS_FRA + 32768
WS_FRC = WS_FRU + 32768
WS_END = WS_FRC + 4096

BUCKET_MAGIC = 219902326
NEG_LOG2E = 0xBFB8AA3B
SRD3 = 0x00020000

S_X, S_EA, S_SRC, S_DST, S_WA, S_WB, S_WC, S_WU = 16, 18, 20, 22, 24, 26, 28, 30
S_WV, S_OUT, S_DBG, S_WS = 32, 34, 36, 38


def n0(b):
    return (625 * b + 31) >> 5


def load_kernargs(a):
    a('s_load_dwordx16 s[16:31], s[0:1], 0')
    a('s_load_dwordx8 s[32:39], s[0:1], 64')


def srd(a, d, ptr, nbytes, off=0, stride=0):
    if off:
        a(f's_add_u32 s{d}, s{ptr}, {off}')
        a(f's_addc_u32 s{d + 1}, s{ptr + 1}, 0')
    else:
        a(f's_mov_b32 s{d}, s{ptr}')
        a(f's_mov_b32 s{d + 1}, s{ptr + 1}')
    a(f's_and_b32 s{d + 1}, s{d + 1}, 0xffff')
    if stride:
        a(f's_or_b32 s{d + 1}, s{d + 1}, {stride << 16}')
    a(f's_mov_b32 s{d + 2}, {nbytes}')
    a(f's_mov_b32 s{d + 3}, {SRD3:#x}')


def S(d, n=4):
    return f's[{d}:{d + n - 1}]'


def V(d, n=1):
    return f'v{d}' if n == 1 else f'v[{d}:{d + n - 1}]'


def mfma(d, a, b, c=None):
    cc = V(d, 16) if c is None else c
    return f'v_mfma_f32_32x32x16_bf16 {V(d, 16)}, {V(a, 4)}, {V(b, 4)}, {cc}'


def wave_scan_incl(a, v):
    for sh in (1, 2, 4, 8):
        a(f'v_add_u32_dpp v{v}, v{v}, v{v} row_shr:{sh} row_mask:0xf bank_mask:0xf')
    a(f'v_add_u32_dpp v{v}, v{v}, v{v} row_bcast:15 row_mask:0xa bank_mask:0xf')
    a(f'v_add_u32_dpp v{v}, v{v}, v{v} row_bcast:31 row_mask:0xc bank_mask:0xf')
```

```python
from asm import Asm
from common import *

K1_BIN0, K1_T10, K1_FR0, K1_END = 0, 128, 384, 386
K1_LDS = 57344

L_HIST = 0
L_WSUM = 2048
L_RECS = 2304
L_ES = 7424


def gen_bin(a):
    sDST, sSRC, sEA, sREC, sES, sOFF = 40, 44, 48, 52, 56, 60
    sC, sW = 2, 3
    vTid, vLane = 0, 1
    vI4, vI32 = 2, 3
    vD = [4, 5, 6]
    vS = [7, 8, 9]
    vE = [12, 20, 28]
    vB4 = [36, 37, 38]
    vRank = [39, 40, 41]
    vRec = [42, 43, 44]
    vT = [45, 46, 47, 48, 49]
    vOne, vCnt, vIncl, vExcl = 50, 51, 52, 53
    vPos = [54, 55, 56]
    sMask2 = 64

    srd(a, sDST, S_DST, E * 4)
    srd(a, sSRC, S_SRC, E * 4)
    srd(a, sEA, S_EA, E * 32)
    a(f's_mul_i32 s4, s{sC}, {CH}')
    a(f'v_add_u32 v{vI4}, s4, v{vTid}')
    a(f'v_lshlrev_b32 v{vI32}, 5, v{vI4}')
    a(f'v_lshlrev_b32 v{vI4}, 2, v{vI4}')
    a('s_movk_i32 s5, 4096')
    a('s_movk_i32 s6, 16384')
    a('s_mov_b32 s7, 32768')
    for r in range(3):
        if r < 2:
            a(f'buffer_load_dword v{vD[r]}, v{vI4}, {S(sDST)}, 0 offen offset:{2048 * r}')
        else:
            a(f'buffer_load_dword v{vD[r]}, v{vI4}, {S(sDST)}, s5 offen')
    for r in range(3):
        if r < 2:
            a(f'buffer_load_dword v{vS[r]}, v{vI4}, {S(sSRC)}, 0 offen offset:{2048 * r}')
        else:
            a(f'buffer_load_dword v{vS[r]}, v{vI4}, {S(sSRC)}, s5 offen')
    for r in range(3):
        so = ['0', 's6', 's7'][r]
        a(f'buffer_load_dwordx4 {V(vE[r], 4)}, v{vI32}, {S(sEA)}, {so} offen')
        a(f'buffer_load_dwordx4 {V(vE[r] + 4, 4)}, v{vI32}, {S(sEA)}, {so} offen offset:16')
    a(f'v_lshlrev_b32 v{vT[0]}, 2, v{vTid}')
    a(f'v_mov_b32 v{vT[1]}, 0')
    a(f'ds_write_b32 v{vT[0]}, v{vT[1]} offset:{L_HIST}')
    a(f'ds_write_b32 v{vT[1]}, v{vT[1]} offset:{L_WSUM}')
    a(f'v_mov_b32 v{vOne}, 1')
    srd(a, sREC, S_WS, E * 4, off=WS_REC)
    srd(a, sES, S_WS, E * 32, off=WS_ES)
    srd(a, sOFF, S_WS, OFF_BYTES, off=WS_OFF)
    a(f's_movk_i32 s8, {CH - 1024}')
    a(f'v_cmp_gt_u32 {S(sMask2, 2)}, s8, v{vTid}')
    a(f's_mov_b32 s9, {BUCKET_MAGIC}')
    a('s_movk_i32 s10, 625')
    a('s_waitcnt lgkmcnt(0)')
    a('s_barrier')
    for r in range(3):
        a(f's_waitcnt vmcnt({11 - r})')
        a(f'v_mul_hi_u32 v{vT[0]}, v{vD[r]}, s9')
        a(f'v_mad_u32_u24 v{vT[1]}, v{vT[0]}, s10, 31')
        a(f'v_lshrrev_b32 v{vT[1]}, 5, v{vT[1]}')
        a(f'v_sub_u32 v{vT[1]}, v{vD[r]}, v{vT[1]}')
        a(f'v_lshlrev_b32 v{vB4[r]}, 2, v{vT[0]}')
        if r == 2:
            a(f's_mov_b64 exec, {S(sMask2, 2)}')
        a(f'ds_add_rtn_u32 v{vRank[r]}, v{vB4[r]}, v{vOne} offset:{L_HIST}')
        if r == 2:
            a('s_mov_b64 exec, -1')
        a(f'v_and_b32 v{vT[2]}, 0x13, v{vT[1]}')
        a(f'v_lshlrev_b32 v{vT[2]}, 1, v{vT[2]}')
        a(f'v_and_b32 v{vT[3]}, 4, v{vT[1]}')
        a(f'v_lshl_or_b32 v{vT[2]}, v{vT[3]}, 2, v{vT[2]}')
        a(f'v_and_or_b32 v{vT[2]}, v{vT[1]}, 8, v{vT[2]}')
        a(f'v_and_b32 v{vT[0]}, 3, v{vT[0]}')
        a(f'v_lshlrev_b32 v{vT[0]}, 22, v{vT[0]}')
        a(f'v_lshl_or_b32 v{vRec[r]}, v{vT[2]}, 16, v{vT[0]}')
    for r in range(3):
        a(f's_waitcnt vmcnt({8 - r})')
        a(f'v_or_b32 v{vRec[r]}, v{vRec[r]}, v{vS[r]}')
    a('s_waitcnt lgkmcnt(0)')
    a('s_barrier')
    a(f'v_lshlrev_b32 v{vT[0]}, 2, v{vTid}')
    a(f'ds_read_b32 v{vCnt}, v{vT[0]} offset:{L_HIST}')
    a('s_waitcnt lgkmcnt(0)')
    a(f'v_mov_b32 v{vIncl}, v{vCnt}')
    wave_scan_incl(a, vIncl)
    a(f'v_readlane_b32 s11, v{vIncl}, 63')
    a(f's_lshl_b32 s12, s{sW}, 2')
    a(f'v_mov_b32 v{vT[1]}, s11')
    a(f'v_mov_b32 v{vT[2]}, s12')
    a(f'ds_write_b32 v{vT[2]}, v{vT[1]} offset:{L_WSUM + 4}')
    a('s_waitcnt lgkmcnt(0)')
    a('s_barrier')
    a(f'v_and_b32 v{vT[1]}, 7, v{vLane}')
    a(f'v_lshlrev_b32 v{vT[1]}, 2, v{vT[1]}')
    a(f'ds_read_b32 v{vT[2]}, v{vT[1]} offset:{L_WSUM}')
    a('s_waitcnt lgkmcnt(0)')
    for sh in (1, 2, 4):
        a(f'v_add_u32_dpp v{vT[2]}, v{vT[2]}, v{vT[2]} row_shr:{sh} row_mask:0xf bank_mask:0xf')
    a(f'v_readlane_b32 s11, v{vT[2]}, s{sW}')
    a(f'v_sub_u32 v{vExcl}, v{vIncl}, v{vCnt}')
    a(f'v_add_u32 v{vExcl}, s11, v{vExcl}')
    a(f'ds_write_b32 v{vT[0]}, v{vExcl} offset:{L_HIST}')
    a('s_waitcnt lgkmcnt(0)')
    a('s_barrier')
    for r in range(3):
        a(f'ds_read_b32 v{vPos[r]}, v{vB4[r]} offset:{L_HIST}')
    a('s_waitcnt vmcnt(0) lgkmcnt(0)')
    for r in range(3):
        a(f'v_add_u32 v{vPos[r]}, v{vPos[r]}, v{vRank[r]}')
        a(f'v_lshlrev_b32 v{vT[1]}, 2, v{vPos[r]}')
        a(f'v_lshlrev_b32 v{vT[2]}, 5, v{vPos[r]}')
        if r == 2:
            a(f's_mov_b64 exec, {S(sMask2, 2)}')
        a(f'ds_write_b32 v{vT[1]}, v{vRec[r]} offset:{L_RECS}')
        a(f'ds_write_b128 v{vT[2]}, {V(vE[r], 4)} offset:{L_ES}')
        a(f'ds_write_b128 v{vT[2]}, {V(vE[r] + 4, 4)} offset:{L_ES + 16}')
        if r == 2:
            a('s_mov_b64 exec, -1')
    a(f'v_lshlrev_b32 v{vT[3]}, 8, v{vTid}')
    a(f's_lshl_b32 s12, s{sC}, 1')
    a(f'v_add_u32 v{vT[3]}, s12, v{vT[3]}')
    a(f'buffer_store_short v{vExcl}, v{vT[3]}, {S(sOFF)}, 0 offen')
    a(f'v_mov_b32 v{vT[4]}, {CH}')
    a(f'v_add_u32 v{vT[3]}, 256, v{vT[3]}')
    a(f's_movk_i32 s13, 511')
    a(f'v_cmp_eq_u32 vcc, s13, v{vTid}')
    a('v_bfrev_b32 v57, 1')
    a(f'v_cndmask_b32 v{vT[3]}, v57, v{vT[3]}, vcc')
    a(f'buffer_store_short v{vT[4]}, v{vT[3]}, {S(sOFF)}, 0 offen')
    a('s_waitcnt lgkmcnt(0)')
    a('s_barrier')
    a(f'v_lshlrev_b32 v{vT[0]}, 2, v{vTid}')
    a(f'v_lshlrev_b32 v{vT[1]}, 4, v{vTid}')
    for r in range(3):
        a(f'ds_read_b32 v{vD[r]}, v{vT[0]} offset:{L_RECS + 2048 * r}')
    for r in range(5):
        a(f'ds_read_b128 {V(12 + 4 * r, 4)}, v{vT[1]} offset:{L_ES + 8192 * r}')
    a(f's_mul_i32 s4, s{sC}, {CH * 4}')
    a(f's_mul_i32 s14, s{sC}, {CH * 32}')
    a(f'v_add_u32 v{vT[0]}, s4, v{vT[0]}')
    a(f'v_add_u32 v{vT[1]}, s14, v{vT[1]}')
    for r in range(3):
        a(f's_waitcnt lgkmcnt({7 - r})')
        if r < 2:
            a(f'buffer_store_dword v{vD[r]}, v{vT[0]}, {S(sREC)}, 0 offen offset:{2048 * r}')
        else:
            a(f's_mov_b64 exec, {S(sMask2, 2)}')
            a(f'buffer_store_dword v{vD[r]}, v{vT[0]}, {S(sREC)}, s5 offen')
            a('s_mov_b64 exec, -1')
    a('s_movk_i32 s4, 8192')
    a('s_movk_i32 s14, 24576')
    a(f's_movk_i32 s8, {CH * 2 - 2048}')
    a(f'v_cmp_gt_u32 vcc, s8, v{vTid}')
    for r in range(5):
        so = ['0', 's4', 's6', 's14', 's7'][r]
        a(f's_waitcnt lgkmcnt({4 - r})')
        if r == 4:
            a('s_mov_b64 exec, vcc')
        a(f'buffer_store_dwordx4 {V(12 + 4 * r, 4)}, v{vT[1]}, {S(sES)}, {so} offen')
    a('s_endpgm')


def gen_t1(a):
    sX, sWB, sWV, sT = 40, 44, 48, 52
    sW, sG, sH, sN0, sNG = 3, 4, 5, 6, 7
    vTid, vLane = 0, 1
    vW = 8
    vXo = 40
    vAcc = 72
    vP = 88
    vT = [96, 97, 98, 99, 100, 101]
    vAW, vAX, vSt = 102, 103, 104
    vC, vHH = 105, 106

    srd(a, sX, S_X, N * 256)
    srd(a, sWB, S_WB, 128 * 256)
    srd(a, sWV, S_WV, 128 * 256)
    srd(a, sT, S_WS, 4 * TQ, off=WS_TBL)
    a(f's_sub_u32 s8, s2, {K1_T10}')
    a(f's_lshr_b32 s{sG}, s8, 1')
    a(f's_and_b32 s{sH}, s8, 1')
    a(f's_mul_i32 s{sN0}, s{sG}, 2500')
    a(f's_add_u32 s9, s{sN0}, 2531')
    a(f's_add_u32 s{sN0}, s{sN0}, 31')
    a(f's_lshr_b32 s{sN0}, s{sN0}, 5')
    a('s_lshr_b32 s9, s9, 5')
    a(f's_sub_u32 s{sNG}, s9, s{sN0}')
    a(f'v_lshrrev_b32 v{vT[0]}, 3, v{vLane}')
    a(f'v_and_b32 v{vT[1]}, 7, v{vLane}')
    a(f'v_lshrrev_b32 v{vT[2]}, 2, v{vLane}')
    a(f'v_and_b32 v{vT[2]}, 4, v{vT[2]}')
    a(f'v_xor_b32 v{vT[1]}, v{vT[1]}, v{vT[2]}')
    a(f'v_lshlrev_b32 v{vT[1]}, 4, v{vT[1]}')
    a(f'v_lshl_add_u32 v{vT[1]}, v{vT[0]}, 8, v{vT[1]}')
    a(f's_and_b32 s8, s{sW}, 3')
    a('s_lshl_b32 s9, s8, 13')
    a(f's_lshl_b32 s10, s{sH}, 7')
    a('s_add_u32 s9, s9, s10')
    a(f'v_add_u32 v{vT[1]}, s9, v{vT[1]}')
    a(f's_lshl_b32 s11, s{sW}, 12')
    a(f's_cmp_ge_u32 s{sW}, 4')
    a(f's_cselect_b32 s56, s{sWV}, s{sWB}')
    a(f's_cselect_b32 s57, s{sWV + 1}, s{sWB + 1}')
    a(f's_mov_b32 s58, s{sWB + 2}')
    a(f's_mov_b32 s59, {SRD3:#x}')
    for j in range(4):
        a(f's_add_u32 m0, s11, {j * 1024}')
        a(f's_movk_i32 s12, {j * 2048}')
        a(f'buffer_load_dwordx4 v{vT[1]}, s[56:59], s12 offen lds')
    a(f'v_lshrrev_b32 v{vT[0]}, 4, v{vLane}')
    a(f's_mul_i32 s12, s{sW}, 12')
    a(f'v_add_u32 v{vT[0]}, s12, v{vT[0]}')
    a(f'v_and_b32 v{vT[2]}, 15, v{vLane}')
    a(f's_mul_i32 s13, s{sW}, 3072')
    a(f's_add_u32 s13, s13, 32768')
    for j in range(3):
        a(f'v_add_u32 v{vT[3]}, {4 * j}, v{vT[0]}')
        a(f'v_and_b32 v{vT[4]}, 15, v{vT[3]}')
        a(f'v_xor_b32 v{vT[4]}, v{vT[4]}, v{vT[2]}')
        a(f'v_add_u32 v{vT[3]}, s{sN0}, v{vT[3]}')
        a(f'v_lshlrev_b32 v{vT[3]}, 8, v{vT[3]}')
        a(f'v_lshl_add_u32 v{vT[3]}, v{vT[4]}, 4, v{vT[3]}')
        a(f's_add_u32 m0, s13, {j * 1024}')
        a('s_nop 0')
        a(f'buffer_load_dwordx4 v{vT[3]}, {S(sX)}, 0 offen lds')
    a('v_bfrev_b32 v107, 1')
    a(f'v_and_b32 v{vC}, 31, v{vLane}')
    a(f'v_lshrrev_b32 v{vHH}, 5, v{vLane}')
    a(f's_and_b32 s8, s{sW}, 1')
    a(f's_bfe_u32 s9, s{sW}, 0x10001')
    a(f'v_bfe_u32 v{vT[0]}, v{vLane}, 2, 2')
    a(f'v_lshl_add_u32 v{vT[1]}, v{vHH}, 3, v{vT[0]}')
    a(f'v_lshlrev_b32 v{vT[1]}, 7, v{vT[1]}')
    a(f'v_bfe_u32 v{vT[2]}, v{vLane}, 4, 1')
    a(f'v_lshlrev_b32 v{vT[2]}, 1, v{vT[2]}')
    a(f'v_bfe_u32 v{vT[3]}, v{vLane}, 1, 1')
    a(f'v_or_b32 v{vT[2]}, v{vT[2]}, v{vT[3]}')
    a('s_lshl_b32 s10, s9, 2')
    a(f'v_or_b32 v{vT[2]}, s10, v{vT[2]}')
    a(f'v_lshrrev_b32 v{vT[3]}, 1, v{vT[0]}')
    a(f'v_lshlrev_b32 v{vT[3]}, 2, v{vT[3]}')
    a(f'v_xor_b32 v{vT[2]}, v{vT[2]}, v{vT[3]}')
    a(f'v_lshl_add_u32 v{vT[1]}, v{vT[2]}, 4, v{vT[1]}')
    a(f'v_and_b32 v{vT[3]}, 1, v{vLane}')
    a(f'v_lshl_add_u32 v{vT[1]}, v{vT[3]}, 3, v{vT[1]}')
    a('s_lshl_b32 s10, s8, 14')
    a(f'v_add_u32 v{vAW}, s10, v{vT[1]}')
    a(f'v_and_b32 v{vT[0]}, 15, v{vC}')
    a(f'v_xor_b32 v{vT[0]}, v{vT[0]}, v{vHH}')
    a(f'v_lshlrev_b32 v{vT[0]}, 4, v{vT[0]}')
    a(f'v_lshl_add_u32 v{vT[0]}, v{vC}, 8, v{vT[0]}')
    a(f's_lshr_b32 s10, s{sW}, 2')
    a('s_lshl_b32 s14, s10, 6')
    a('s_lshl_b32 s10, s10, 14')
    a('s_add_u32 s10, s10, 32768')
    a(f'v_add_u32 v{vAX}, s10, v{vT[0]}')
    a(f's_lshl_b32 s10, s{sH}, 1')
    a('s_add_u32 s10, s10, s9')
    a(f's_mul_i32 s10, s10, {TQ}')
    a('s_lshl_b32 s11, s8, 6')
    a('s_add_u32 s10, s10, s11')
    a(f's_add_u32 s11, s{sN0}, s14')
    a('s_lshl_b32 s11, s11, 7')
    a('s_add_u32 s10, s10, s11')
    a(f'v_lshlrev_b32 v{vSt}, 7, v{vC}')
    a(f'v_lshl_add_u32 v{vSt}, v{vHH}, 4, v{vSt}')
    a(f'v_add_u32 v{vSt}, s10, v{vSt}')
    a('s_cmp_eq_u32 s8, 0')
    a(f's_cselect_b32 s15, {NEG_LOG2E:#x}, 1.0')
    a('s_waitcnt vmcnt(0)')
    a('s_barrier')

    def tile(first, row_off, lds_off):
        for s in range(8):
            if first:
                a(f'ds_read_b64_tr_b16 {V(vW + 4 * s, 2)}, v{vAW} offset:{s * 2048}')
                a(f'ds_read_b64_tr_b16 {V(vW + 4 * s + 2, 2)}, v{vAW} offset:{s * 2048 + 512}')
            a(f'v_xor_b32 v{vT[0]}, {s << 5}, v{vAX}')
            a(f'ds_read_b128 {V(vXo + 4 * s, 4)}, v{vT[0]} offset:{lds_off}')
            n = 3 if first else 1
            if s >= 3:
                k = s - 3
                a(f's_waitcnt lgkmcnt({3 * n})')
                a(mfma(vAcc, vW + 4 * k, vXo + 4 * k, '0' if k == 0 else None))
        for k in range(5, 8):
            n = 3 if first else 1
            a(f's_waitcnt lgkmcnt({(7 - k) * n})')
            a(mfma(vAcc, vW + 4 * k, vXo + 4 * k))
        a(f'v_add_u32 v{vT[1]}, s14, v{vC}')
        if row_off:
            a(f'v_add_u32 v{vT[1]}, {row_off}, v{vT[1]}')
        a(f'v_cmp_gt_u32 vcc, s{sNG}, v{vT[1]}')
        a(f'v_add_u32 v{vT[2]}, {row_off * 128}, v{vSt}')
        a(f'v_cndmask_b32 v{vT[2]}, v107, v{vT[2]}, vcc')
        for i in range(16):
            a(f'v_mul_f32 v{vAcc + i}, s15, v{vAcc + i}')
        for i in range(8):
            a(f'v_cvt_pk_bf16_f32 v{vP + i}, v{vAcc + 2 * i}, v{vAcc + 2 * i + 1}')
        for p in range(2):
            a(f'v_permlane32_swap_b32 v{vP + 4 * p}, v{vP + 4 * p + 2}')
            a(f'v_permlane32_swap_b32 v{vP + 4 * p + 1}, v{vP + 4 * p + 3}')
        for p in range(2):
            a(f'buffer_store_dwordx4 {V(vP + 4 * p, 4)}, v{vT[2]}, {S(sT)}, 0 offen offset:{32 * p}')

    tile(True, 0, 0)
    a(f's_cmp_ge_u32 s{sW}, 4')
    a('s_cbranch_scc1 L_t1_done')
    tile(False, 32, 8192)
    a.label('L_t1_done')
    a('s_endpgm')


def gen_frag(a):
    sWm, sWC, sF = 40, 44, 48
    sW = 3
    vTid, vLane = 0, 1
    vT = [2, 3, 4, 5, 6, 7]
    vR = 8
    vA = 30
    a(f's_cmp_eq_u32 s2, {K1_FR0}')
    a(f's_cselect_b32 s{sWm}, s{S_WA}, s{S_WU}')
    a(f's_cselect_b32 s{sWm + 1}, s{S_WA + 1}, s{S_WU + 1}')
    a(f's_and_b32 s{sWm + 1}, s{sWm + 1}, 0xffff')
    a(f's_mov_b32 s{sWm + 2}, {128 * 256}')
    a(f's_mov_b32 s{sWm + 3}, {SRD3:#x}')
    srd(a, sWC, S_WC, 16 * 256)
    srd(a, sF, S_WS, WS_END - WS_FRA, off=WS_FRA)
    a(f'v_lshrrev_b32 v{vT[0]}, 4, v{vLane}')
    a(f'v_and_b32 v{vT[1]}, 15, v{vLane}')
    a(f'v_lshlrev_b32 v{vT[2]}, 2, v{vT[0]}')
    a(f'v_xor_b32 v{vT[1]}, v{vT[1]}, v{vT[2]}')
    a(f'v_lshlrev_b32 v{vT[1]}, 4, v{vT[1]}')
    a(f'v_lshl_add_u32 v{vT[1]}, v{vT[0]}, 8, v{vT[1]}')
    a(f's_lshl_b32 s8, s{sW}, 12')
    for j in range(4):
        a(f's_add_u32 m0, s8, {j * 1024}')
        a(f's_add_u32 s9, s8, {j * 1024}')
        a(f'buffer_load_dwordx4 v{vT[1]}, {S(sWm)}, s9 offen lds')
    a(f's_and_b32 s10, s{sW}, 3')
    a('s_lshl_b32 s9, s10, 10')
    a('s_add_u32 m0, s9, 32768')
    a('s_nop 0')
    a(f'buffer_load_dwordx4 v{vT[1]}, {S(sWC)}, s9 offen lds')
    a(f'v_lshrrev_b32 v{vT[0]}, 5, v{vLane}')
    a(f'v_bfe_u32 v{vT[2]}, v{vLane}, 2, 2')
    a(f'v_lshl_add_u32 v{vT[3]}, v{vT[0]}, 3, v{vT[2]}')
    a(f'v_lshlrev_b32 v{vT[3]}, 8, v{vT[3]}')
    a(f'v_bfe_u32 v{vT[4]}, v{vLane}, 4, 1')
    a(f'v_lshlrev_b32 v{vT[4]}, 1, v{vT[4]}')
    a(f'v_bfe_u32 v{vT[5]}, v{vLane}, 1, 1')
    a(f'v_or_b32 v{vT[4]}, v{vT[4]}, v{vT[5]}')
    a('s_lshl_b32 s11, s10, 2')
    a(f'v_or_b32 v{vT[4]}, s11, v{vT[4]}')
    a(f'v_lshlrev_b32 v{vT[2]}, 2, v{vT[2]}')
    a(f'v_xor_b32 v{vT[4]}, v{vT[4]}, v{vT[2]}')
    a(f'v_lshl_add_u32 v{vT[3]}, v{vT[4]}, 4, v{vT[3]}')
    a(f'v_and_b32 v{vT[5]}, 1, v{vLane}')
    a(f'v_lshl_add_u32 v{vT[3]}, v{vT[5]}, 3, v{vT[3]}')
    a(f's_lshr_b32 s11, s{sW}, 2')
    a('s_lshl_b32 s12, s11, 14')
    a(f'v_add_u32 v{vA}, s12, v{vT[3]}')
    a(f's_cmp_eq_u32 s2, {K1_FR0}')
    a(f's_cselect_b32 s12, 0, {WS_FRU - WS_FRA}')
    a('s_lshl_b32 s13, s10, 13')
    a('s_add_u32 s12, s12, s13')
    a('s_lshl_b32 s13, s11, 12')
    a('s_add_u32 s12, s12, s13')
    a(f'v_lshlrev_b32 v{vT[0]}, 4, v{vLane}')
    a(f'v_add_u32 v{vT[1]}, s12, v{vT[0]}')
    a('s_waitcnt vmcnt(0)')
    a('s_barrier')
    for s in range(4):
        a(f'ds_read_b64_tr_b16 {V(vR + 4 * s, 2)}, v{vA} offset:{s * 4096}')
        a(f'ds_read_b64_tr_b16 {V(vR + 4 * s + 2, 2)}, v{vA} offset:{s * 4096 + 1024}')
    a(f'ds_read_b64_tr_b16 {V(24, 2)}, v{vT[3]} offset:32768')
    a(f'ds_read_b64_tr_b16 {V(26, 2)}, v{vT[3]} offset:{32768 + 1024}')
    for s in range(4):
        a(f's_waitcnt lgkmcnt({8 - 2 * s})')
        a(f'buffer_store_dwordx4 {V(vR + 4 * s, 4)}, v{vT[1]}, {S(sF)}, 0 offen offset:{s * 1024}')
    a(f's_cmp_eq_u32 s2, {K1_FR0}')
    a('s_cbranch_scc0 L_fr_done')
    a(f's_cmp_ge_u32 s{sW}, 4')
    a('s_cbranch_scc1 L_fr_done')
    a('s_waitcnt lgkmcnt(0)')
    a(f's_mov_b32 s12, {NEG_LOG2E:#x}')
    for i in range(4):
        a(f'v_lshlrev_b32 v{32 + 2 * i}, 16, v{24 + i}')
        a(f'v_and_b32 v{33 + 2 * i}, 0xffff0000, v{24 + i}')
    for i in range(8):
        a(f'v_mul_f32 v{32 + i}, s12, v{32 + i}')
    for i in range(4):
        a(f'v_cvt_pk_bf16_f32 v{24 + i}, v{32 + 2 * i}, v{33 + 2 * i}')
    a('s_lshl_b32 s13, s10, 10')
    a(f's_add_u32 s13, s13, {WS_FRC - WS_FRA}')
    a(f'v_add_u32 v{vT[0]}, s13, v{vT[0]}')
    a(f'buffer_store_dwordx4 {V(24, 4)}, v{vT[0]}, {S(sF)}, 0 offen')
    a.label('L_fr_done')
    a('s_endpgm')


def gen_k1():
    a = Asm()
    a(f's_cmp_ge_u32 s2, {K1_END}')
    a('s_cbranch_scc1 L_k1_exit')
    load_kernargs(a)
    a('v_and_b32 v1, 63, v0')
    a('v_lshrrev_b32 v2, 6, v0')
    a('v_readfirstlane_b32 s3, v2')
    a('s_waitcnt lgkmcnt(0)')
    a(f's_cmp_ge_u32 s2, {K1_FR0}')
    a('s_cbranch_scc1 L_k1_frag')
    a(f's_cmp_ge_u32 s2, {K1_T10}')
    a('s_cbranch_scc1 L_k1_t1')
    gen_bin(a)
    a.label('L_k1_t1')
    gen_t1(a)
    a.label('L_k1_frag')
    gen_frag(a)
    a.label('L_k1_exit')
    a('s_endpgm')
    return a
K1_VGPR = 112
```

```python
from asm import Asm
from common import *

K2_GRID = 256
CAP = 416
CAPP = 512

L_EIDX = 0
L_SRC = 8192
L_OAD = 12288
L_DELTA = 16384
L_CNT = 18432
L_O = 18560
O_STRIDE = 2176
L_RING = 36864
L_XR = L_RING + 8 * 8192
K2_LDS = L_XR + 4 * 8192

sW, sG, sH, sB4, sQ, sB, sNB0, sNBN = 3, 4, 5, 6, 7, 8, 9, 10
sX, sT, sE, sR, sO, sF, sOut = 40, 44, 48, 52, 56, 60, 64
sTiles, sCnt, sRound, sRounds, sRing, sOb, sXr, sLeft = 68, 69, 70, 71, 72, 73, 74, 75
sM512, s7C0, sCAP, sPF = 76, 77, 78, 80
sTmp = 11

vLane, vC, vHH = 1, 2, 3
vASrc, vAEi, vAOd = 4, 5, 6
vO0a, vO1a, vOTa, vOTb, vRB, vRH = 7, 8, 9, 10, 11, 12
vOne16, vZero = 13, 14
vOA = [15, 16]
vT0 = 17
vEI = 20
vIx = 22
vPF = 30
DEN, NUM = 32, 48
G = [64, 80]
H = [96, 112]
EP, MP = 128, 136
AP, WC = 144, 152
I0, I1 = 156, 160
BP, HP, OO = 164, 172, 180
SS = [188, 196]
EE = [204, 208]
UU = 212
K2_VGPR = 228

vKeep = list(range(228, 241))
K2_VGPR = 241
kS = vKeep[0:4]
kEnd = vKeep[4:8]
kD0, kD1, kCb, kDc = vKeep[8:12]
vMu = vKeep[12]
vRec = [G[0] + i for i in range(8)]
vEi = [G[0] + 8 + i for i in range(8)]
vDl = [BP + i for i in range(8)]
vB4r = [HP + i for i in range(8)]
vP = [SS[0] + i for i in range(4)]
vL15 = SS[0] + 4
S_OFF0 = OO
WA = H[0]
WU = [G[1] + 4 * i for i in range(4)] + [EP, EP + 4, MP, MP + 4]


def onehot_pairs(a, dst, base_vals, vt, hmul):
    a(f'v_mul_u32_u24 v{vt}, {hmul}, v{vHH}')
    a(f'v_sub_u32 v{vt}, v{vC}, v{vt}')
    for p, b in enumerate(base_vals):
        a(f'v_subrev_u32 v{vt + 1}, {b}, v{vt}')
        a(f'v_lshlrev_b32 v{vt + 2}, 4, v{vt + 1}')
        a(f'v_lshlrev_b32 v{vt + 2}, v{vt + 2}, v{vOne16}')
        a(f'v_cmp_gt_u32 vcc, 2, v{vt + 1}')
        a(f'v_cndmask_b32 v{dst + p}, v{vZero}, v{vt + 2}, vcc')


def dummy_fill(a):
    a(f'v_lshlrev_b32 v{vT0}, 4, v0')
    a(f'v_mov_b32 v{BP}, -1')
    a(f'v_mov_b32 v{BP + 1}, -1')
    a(f'v_mov_b32 v{BP + 2}, -1')
    a(f'v_mov_b32 v{BP + 3}, -1')
    a(f'ds_write_b128 v{vT0}, {V(BP, 4)} offset:{L_EIDX}')
    a(f'v_lshlrev_b32 v{vT0 + 1}, 3, v0')
    a(f'ds_write_b64 v{vT0 + 1}, {V(BP, 2)} offset:{L_SRC}')
    a(f'v_mov_b32 v{BP + 4}, 0x08000800')
    a(f'v_mov_b32 v{BP + 5}, 0x08000800')
    a(f'ds_write_b64 v{vT0 + 1}, {V(BP + 4, 2)} offset:{L_OAD}')


def issue_rec_loads(a):
    for u in range(2):
        for k in range(4):
            i = 4 * u + k
            if u:
                a(f'v_add_u32 v{vT0}, 16, v{vP[k]}')
                src = vT0
            else:
                src = vP[k]
            a(f'v_cmp_lt_u32 vcc, v{src}, v{kEnd[k]}')
            a(f'v_add_u32 v{vEi[i]}, v{src}, v{kCb}')
            if k:
                a(f'v_add_u32 v{vEi[i]}, {k * 4 * CH}, v{vEi[i]}')
            a(f'v_cndmask_b32 v{vEi[i]}, v{vL15 + 1}, v{vEi[i]}, vcc')
            a(f'v_lshlrev_b32 v{vT0 + 1}, 2, v{vEi[i]}')
            a(f'buffer_load_dword v{vRec[i]}, v{vT0 + 1}, {S(sR)}, 0 offen')


def placement(a, tag, vm):
    a(f's_waitcnt vmcnt({vm})')
    for i in range(8):
        k = i & 3
        a(f'v_bfe_u32 v{vB4r[i]}, v{vRec[i]}, 22, 2')
        a(f'v_lshl_add_u32 v{vT0}, v{vB4r[i]}, 2, v{kDc}')
        a(f'ds_read_b32 v{vDl[i]}, v{vT0} offset:{L_DELTA + 64 * k}')
    a('s_waitcnt lgkmcnt(0)')
    for i in range(8):
        lp = vDl[i]
        a(f'v_add_u32 v{lp}, v{vEi[i]}, v{lp}')
        a(f'v_mad_i32_i24 v{vT0}, v{vB4r[i]}, s{sM512}, v{lp}')
        a(f'v_cmp_gt_u32 vcc, s{sCAP}, v{vT0}')
        if i >= 4:
            a(f's_cbranch_vccz L_pl_{tag}_{i}')
        a(f'v_lshlrev_b32 v{vT0}, 2, v{lp}')
        a(f'v_lshlrev_b32 v{vT0 + 1}, 1, v{lp}')
        a(f'v_bfe_u32 v{vT0 + 2}, v{vRec[i]}, 16, 6')
        a(f'v_bitop3_b32 v{vT0 + 2}, v{vT0 + 2}, v{vT0}, 48 bitop3:0x78')
        a(f'v_lshlrev_b32 v{lp}, 4, v{vT0}')
        a(f'v_and_or_b32 v{vT0 + 2}, v{lp}, s{s7C0}, v{vT0 + 2}')
        a('s_mov_b64 exec, vcc')
        a(f'ds_write_b32 v{vT0}, v{vEi[i]} offset:{L_EIDX}')
        a(f'ds_write_b16 v{vT0 + 1}, v{vRec[i]} offset:{L_SRC}')
        a(f'ds_write_b16 v{vT0 + 1}, v{vT0 + 2} offset:{L_OAD}')
        a('s_mov_b64 exec, -1')
        if i >= 4:
            a.label(f'L_pl_{tag}_{i}')


def more_check(a, tag):
    a.label(f'L_more_{tag}')
    for k in range(4):
        a(f'v_add_u32 v{vP[k]}, 32, v{vP[k]}')
    a(f'v_cmp_lt_u32 s[12:13], v{vP[0]}, v{kEnd[0]}')
    a(f'v_cmp_lt_u32 s[14:15], v{vP[1]}, v{kEnd[1]}')
    a('s_or_b64 s[12:13], s[12:13], s[14:15]')
    a(f'v_cmp_lt_u32 s[14:15], v{vP[2]}, v{kEnd[2]}')
    a('s_or_b64 s[12:13], s[12:13], s[14:15]')
    a(f'v_cmp_lt_u32 s[14:15], v{vP[3]}, v{kEnd[3]}')
    a('s_or_b64 s[12:13], s[12:13], s[14:15]')
    a('s_cmp_eq_u64 s[12:13], 0')
    a(f's_cbranch_scc1 L_placed_{tag}')
    issue_rec_loads(a)
    placement(a, tag + 'x', 0)
    a(f's_branch L_more_{tag}')
    a.label(f'L_placed_{tag}')


def set_tiles(a):
    a(f's_mul_i32 s11, s{sRound}, {CAP}')
    a(f's_sub_i32 s11, s{sCnt}, s11')
    a('s_max_i32 s11, s11, 0')
    a(f's_min_i32 s11, s11, {CAP}')
    a('s_add_u32 s11, s11, 31')
    a(f's_lshr_b32 s{sTiles}, s11, 5')


def idx_reads(a, tile_off):
    for j in range(4):
        a(f'ds_read_u16 v{vIx + 2 * j}, v{vASrc} offset:{L_SRC + tile_off * 64 + j * 16}')
    a(f'ds_read_b32 v{vEI}, v{vAEi} offset:{L_EIDX + tile_off * 128}')


def oad_read(a, dst, tile_off):
    a(f'ds_read_u16 v{dst}, v{vAOd} offset:{L_OAD + tile_off * 64}')


def dma(slot, esel):
    out = []
    for j in range(4):
        out.append(f's_add_u32 m0, s{sRing}, {slot * 4096 + j * 1024}')
        out.append(f'buffer_load_dwordx4 {V(vIx + 2 * j, 2)}, {S(sT)}, 0 idxen offen lds')
    out.append(f'buffer_load_dwordx4 {V(EE[esel], 4)}, {V(vEI, 2)}, {S(sE)}, 0 idxen offen')
    return out


def operand_reads(slot, sp, oa):
    o = [f'ds_write_b16 v{oa}, v{vOne16}']
    o += [f'ds_read_b128 {V(OO, 4)}, v{vO0a}', f'ds_read_b128 {V(OO + 4, 4)}, v{vO1a}']
    o += [f'ds_read_b64_tr_b16 {V(BP + 2 * i, 2)}, v{vRB} offset:{slot * 4096 + i * 1024}' for i in range(4)]
    o += [f'ds_read_b64_tr_b16 {V(HP + 2 * i, 2)}, v{vRH} offset:{slot * 4096 + i * 1024}' for i in range(4)]
    o += [f'ds_read_b64_tr_b16 {V(SS[sp] + 2 * i, 2)}, v{vOTb if i & 1 else vOTa} offset:{i * 512}' for i in range(4)]
    o += [f'ds_write_b16 v{oa}, v{vZero}']
    return o


def m1(p):
    return [(None, mfma(G[p], EE[p], WC, '0')),
            ('lgkmcnt(13)', mfma(G[p], OO, AP)),
            (None, mfma(G[p], OO + 4, AP + 4)),
            ('lgkmcnt(9)', mfma(G[p], I0, BP)),
            (None, mfma(G[p], I1, BP + 4)),
            ('lgkmcnt(5)', mfma(H[p], I0, HP, '0')),
            (None, mfma(H[p], I1, HP + 4))]


def valu_tile(p):
    g, h = G[p], H[p]
    out = []
    for half in range(2):
        r = range(8 * half, 8 * half + 8)
        out += [f'v_exp_f32 v{g + i}, v{g + i}' for i in r]
        out += [f'v_add_f32 v{g + i}, 1.0, v{g + i}' for i in r]
        out += [f'v_rcp_f32 v{g + i}, v{g + i}' for i in r]
        out += [f'v_mul_f32 v{h + i}, v{g + i}, v{h + i}' for i in r]
        out += [f'v_cvt_pk_bf16_f32 v{EP + i // 2}, v{g + i}, v{g + i + 1}' for i in r if i % 2 == 0]
        out += [f'v_cvt_pk_bf16_f32 v{MP + i // 2}, v{h + i}, v{h + i + 1}' for i in r if i % 2 == 0]
    return out


def m2(sp, half):
    o = 4 * half
    return [mfma(DEN, EP + o, SS[sp] + o), mfma(NUM, MP + o, SS[sp] + o)]


def iteration(a, p, opts):
    q = 1 - p
    V_ = valu_tile(p)
    ins = {i: [] for i in range(-1, 81)}
    lead = ['s_waitcnt lgkmcnt(0)', f'v_add_u32 v{vOA[q]}, s{sOb}, v{vOA[q]}']
    d = dma(p, p)
    m2b = m2(q, 1)
    ins[0] += lead + d[0:2]
    ins[1] += d[2:4] + [m2b[0]]
    ins[2] += d[4:6]
    ins[3] += d[6:9]
    tmp = Asm()
    idx_reads(tmp, p + 3)
    oad_read(tmp, vOA[p], p + 2)
    idx = [i.text for i in tmp.ins]
    ins[4] += idx[0:2]
    ins[5] += idx[2:4] + [m2b[1]]
    ins[6] += idx[4:6]
    rd = operand_reads(q, q, vOA[q])
    ins[8] += ['s_waitcnt vmcnt(5)'] + rd[0:3]
    ins[10] += rd[3:5]
    ins[11] += rd[5:7]
    ins[12] += rd[7:9]
    ins[13] += rd[9:11]
    ins[14] += rd[11:13]
    ins[15] += rd[13:16]
    mm = m1(q)
    pos = [17, 24, 30, 50, 56, 62, 68]
    for (w, m), s in zip(mm, pos):
        if w:
            ins[s].append(f's_waitcnt {w}')
        ins[s].append(m)
    m2a = m2(p, 0)
    ins[42] += [m2a[0]]
    ins[46] += [m2a[1]]
    for i in range(80):
        a(ins[i])
        a(V_[i])
    if p == 1:
        a(f'v_add_u32 v{vASrc}, 128, v{vASrc}')
        a(f'v_add_u32 v{vAEi}, 256, v{vAEi}')
        a(f'v_add_u32 v{vAOd}, 128, v{vAOd}')


def gen_k2(opts):
    a = Asm()
    a(f's_cmp_ge_u32 s2, {K2_GRID}')
    a('s_cbranch_scc1 L_k2_exit')
    load_kernargs(a)
    a(f'v_and_b32 v{vLane}, 63, v0')
    a(f'v_lshrrev_b32 v{vT0}, 6, v0')
    a(f'v_readfirstlane_b32 s{sW}, v{vT0}')
    a(f'v_and_b32 v{vC}, 31, v{vLane}')
    a(f'v_lshrrev_b32 v{vHH}, 5, v{vLane}')
    a(f'v_mov_b32 v{vZero}, 0')
    a(f'v_mov_b32 v{vOne16}, 0x3f80')
    a(f's_lshr_b32 s{sG}, s2, 1')
    a(f's_and_b32 s{sH}, s2, 1')
    a(f's_lshr_b32 s11, s{sW}, 2')
    a(f's_lshl_b32 s12, s11, 1')
    a(f's_add_u32 s12, s12, s{sW}')
    a(f's_and_b32 s{sB4}, s12, 3')
    a(f's_lshl_b32 s{sQ}, s{sH}, 1')
    a(f's_add_u32 s{sQ}, s{sQ}, s11')
    a(f's_lshl_b32 s{sB}, s{sG}, 2')
    a(f's_add_u32 s{sB}, s{sB}, s{sB4}')
    a(f's_mul_i32 s12, s{sB}, 625')
    a('s_add_u32 s13, s12, 656')
    a('s_add_u32 s12, s12, 31')
    a(f's_lshr_b32 s{sNB0}, s12, 5')
    a('s_lshr_b32 s13, s13, 5')
    a(f's_sub_u32 s{sNBN}, s13, s{sNB0}')
    a(f's_lshl_b32 s{sRing}, s{sW}, 13')
    a(f's_add_u32 s{sRing}, s{sRing}, {L_RING}')
    a(f's_mul_i32 s{sOb}, s{sW}, {O_STRIDE}')
    a(f's_add_u32 s{sOb}, s{sOb}, {L_O}')
    a(f's_lshl_b32 s{sXr}, s{sB4}, 13')
    a(f's_add_u32 s{sXr}, s{sXr}, {L_XR}')
    a(f's_movk_i32 s{sM512}, -512')
    a(f's_movk_i32 s{s7C0}, 0x7c0')
    a(f's_movk_i32 s{sCAP}, {CAP}')
    a(f's_mov_b32 s{sRound}, 0')
    dummy_fill(a)
    a(f'v_lshlrev_b32 v{vT0}, 5, v{vLane}')
    a(f'v_add_u32 v{vT0}, s{sOb}, v{vT0}')
    for i in range(4):
        a(f'v_mov_b32 v{BP + 8 + i}, 0')
    a(f'ds_write_b128 v{vT0}, {V(BP + 8, 4)}')
    a(f'ds_write_b128 v{vT0}, {V(BP + 8, 4)} offset:16')
    onehot_pairs(a, I0, [0, 2, 8, 10], vT0, 4)
    onehot_pairs(a, I1, [16, 18, 24, 26], vT0, 4)
    r_, g2, cch, cl = vT0, vT0 + 1, vT0 + 2, BP
    a(f'v_bfe_u32 v{r_}, v{vLane}, 2, 2')
    a(f'v_bfe_u32 v{g2}, v{vLane}, 4, 1')
    a(f'v_bfe_u32 v{cch}, v{vLane}, 1, 1')
    a(f'v_and_b32 v{cl}, 1, v{vLane}')
    a(f'v_lshl_or_b32 v{g2}, v{g2}, 1, v{cch}')
    a(f'v_lshl_add_u32 v{cch}, v{vHH}, 2, v{r_}')
    a(f'v_lshrrev_b32 v{BP + 1}, 1, v{r_}')
    a(f'v_lshlrev_b32 v{BP + 1}, 2, v{BP + 1}')
    a(f'v_xor_b32 v{BP + 1}, v{BP + 1}, v{g2}')
    a(f'v_lshlrev_b32 v{BP + 1}, 4, v{BP + 1}')
    a(f'v_lshl_add_u32 v{BP + 1}, v{cch}, 7, v{BP + 1}')
    a(f'v_lshl_add_u32 v{BP + 1}, v{cl}, 3, v{BP + 1}')
    a(f'v_add_u32 v{vRB}, s{sRing}, v{BP + 1}')
    a(f'v_xor_b32 v{BP + 1}, 64, v{BP + 1}')
    a(f'v_add_u32 v{vRH}, s{sRing}, v{BP + 1}')
    a(f'v_xor_b32 v{BP + 1}, v{g2}, v{vHH}')
    a(f'v_lshlrev_b32 v{BP + 1}, 4, v{BP + 1}')
    a(f'v_lshl_add_u32 v{BP + 1}, v{cch}, 6, v{BP + 1}')
    a(f'v_lshl_add_u32 v{BP + 1}, v{cl}, 3, v{BP + 1}')
    a(f'v_add_u32 v{vOTa}, s{sOb}, v{BP + 1}')
    a(f'v_xor_b32 v{BP + 1}, 32, v{BP + 1}')
    a(f'v_add_u32 v{vOTb}, s{sOb}, v{BP + 1}')
    a(f'v_bfe_u32 v{BP + 1}, v{vC}, 2, 2')
    a(f'v_xor_b32 v{BP + 1}, v{BP + 1}, v{vHH}')
    a(f'v_lshlrev_b32 v{BP + 1}, 4, v{BP + 1}')
    a(f'v_lshl_add_u32 v{BP + 1}, v{vC}, 6, v{BP + 1}')
    a(f'v_add_u32 v{vO0a}, s{sOb}, v{BP + 1}')
    a(f'v_xor_b32 v{BP + 1}, 32, v{BP + 1}')
    a(f'v_add_u32 v{vO1a}, s{sOb}, v{BP + 1}')
    a(f'v_lshrrev_b32 v{BP + 1}, 2, v{vLane}')
    a(f'v_and_b32 v{BP + 1}, 4, v{BP + 1}')
    a(f'v_and_b32 v{BP + 2}, 7, v{vLane}')
    a(f'v_xor_b32 v{BP + 1}, v{BP + 1}, v{BP + 2}')
    a(f'v_lshlrev_b32 v{vIx + 1}, 4, v{BP + 1}')
    for j in range(1, 4):
        a(f'v_mov_b32 v{vIx + 2 * j + 1}, v{vIx + 1}')
    a(f'v_lshlrev_b32 v{vEI + 1}, 4, v{vHH}')
    a(f'v_and_b32 v{vL15}, 15, v{vLane}')
    a(f'v_mov_b32 v{vL15 + 1}, 0x20000000')
    a(f'v_lshrrev_b32 v{vT0}, 4, v{vLane}')
    a(f's_lshl_b32 s11, s{sW}, 4')
    a(f'v_add_u32 v{vT0}, s11, v{vT0}')
    a(f'v_mul_u32_u24 v{kCb}, {CH}, v{vT0}')
    a(f'v_lshlrev_b32 v{kDc}, 4, v{vT0}')
    a(f'v_lshlrev_b32 v{vT0 + 1}, 1, v{vT0}')
    a('s_waitcnt lgkmcnt(0)')
    srd(a, sO, S_WS, OFF_BYTES, off=WS_OFF)
    a(f's_lshl_b32 s11, s{sG}, 10')
    a(f'v_add_u32 v{vT0 + 1}, s11, v{vT0 + 1}')
    for k in range(4):
        a(f'buffer_load_ushort v{kS[k]}, v{vT0 + 1}, {S(sO)}, 0 offen offset:{8 * k}')
    for k in range(4):
        a(f'buffer_load_ushort v{kEnd[k]}, v{vT0 + 1}, {S(sO)}, 0 offen offset:{1024 + 8 * k}')
    a(f's_lshl_b32 s11, s{sB}, 8')
    a(f'v_lshl_add_u32 v{vT0}, v{vLane}, 2, s11')
    a(f'buffer_load_dword v{S_OFF0}, v{vT0}, {S(sO)}, 0 offen')
    a(f'buffer_load_dword v{S_OFF0 + 1}, v{vT0}, {S(sO)}, 0 offen offset:256')
    srd(a, sX, S_X, N * 256)
    srd(a, sF, S_WS, WS_END - WS_FRA, off=WS_FRA)
    srd(a, sR, S_WS, E * 4, off=WS_REC)
    a(f's_lshr_b32 s11, s{sW}, 2')
    a('s_lshl_b32 s12, s11, 4')
    a(f'v_lshrrev_b32 v{vT0}, 4, v{vLane}')
    a(f'v_add_u32 v{vT0}, s12, v{vT0}')
    a(f'v_and_b32 v{vT0 + 1}, 15, v{vLane}')
    a('s_lshl_b32 s13, s11, 12')
    a(f's_add_u32 s13, s13, s{sXr}')
    for j in range(4):
        a(f'v_add_u32 v{BP}, {4 * j}, v{vT0}')
        a(f'v_and_b32 v{BP + 1}, 15, v{BP}')
        a(f'v_xor_b32 v{BP + 1}, v{BP + 1}, v{vT0 + 1}')
        a(f'v_add_u32 v{BP}, s{sNB0}, v{BP}')
        a(f'v_lshlrev_b32 v{BP}, 8, v{BP}')
        a(f'v_lshl_add_u32 v{BP}, v{BP + 1}, 4, v{BP}')
        a(f's_add_u32 m0, s13, {j * 1024}')
        a('s_nop 0')
        a(f'buffer_load_dwordx4 v{BP}, {S(sX)}, 0 offen lds')
    a(f's_lshl_b32 s11, s{sQ}, 13')
    a(f'v_lshl_add_u32 v{vT0}, v{vLane}, 4, s11')
    for s in range(8):
        if s < 4:
            a(f'buffer_load_dwordx4 {V(WA + 4 * s, 4)}, v{vT0}, {S(sF)}, 0 offen offset:{s * 1024}')
        else:
            if s == 4:
                a(f'v_add_u32 v{vT0 + 1}, 4096, v{vT0}')
            a(f'buffer_load_dwordx4 {V(WA + 4 * s, 4)}, v{vT0 + 1}, {S(sF)}, 0 offen offset:{(s - 4) * 1024}')
    a(f's_mov_b32 s12, {WS_FRU - WS_FRA}')
    a(f's_add_u32 s13, s12, 4096')
    for s in range(8):
        a(f'buffer_load_dwordx4 {V(WU[s], 4)}, v{vT0}, {S(sF)}, {"s12" if s < 4 else "s13"} offen offset:{(s & 3) * 1024}')
    a(f's_lshl_b32 s11, s{sQ}, 10')
    a(f's_add_u32 s11, s11, {WS_FRC - WS_FRA}')
    a(f'v_lshlrev_b32 v{vT0 + 1}, 4, v{vLane}')
    a(f'buffer_load_dwordx4 {V(WC, 4)}, v{vT0 + 1}, {S(sF)}, s11 offen')
    NFIRST = 8 + 2 + 4 + 8 + 8 + 1
    a(f's_mul_i32 s11, s{sQ}, {TQ}')
    a(f's_add_u32 s{sT}, s{S_WS}, s11')
    a(f's_addc_u32 s{sT + 1}, s{S_WS + 1}, 0')
    a(f's_and_b32 s{sT + 1}, s{sT + 1}, 0xffff')
    a(f's_or_b32 s{sT + 1}, s{sT + 1}, {128 << 16}')
    a(f's_mov_b32 s{sT + 2}, {N}')
    a(f's_mov_b32 s{sT + 3}, {SRD3:#x}')
    srd(a, sE, S_WS, E, off=WS_ES, stride=32)
    srd(a, sOut, S_OUT, N * 256)
    a(f's_waitcnt vmcnt({NFIRST - 8})')
    for k in range(4):
        a(f'v_add_u32 v{vP[k]}, v{kS[k]}, v{vL15}')
    issue_rec_loads(a)
    NPF = 2 if int(opts.get('prefetch', 1)) else 0
    if NPF:
        a(f's_mul_i32 s11, s{sH}, {2 * TQ}')
        a(f's_add_u32 s{sPF}, s{S_WS}, s11')
        a(f's_addc_u32 s{sPF + 1}, s{S_WS + 1}, 0')
        a(f's_and_b32 s{sPF + 1}, s{sPF + 1}, 0xffff')
        a(f's_mov_b32 s{sPF + 2}, {2 * TQ}')
        a(f's_mov_b32 s{sPF + 3}, {SRD3:#x}')
        a('s_lshr_b32 s11, s2, 3')
        a('s_lshl_b32 s11, s11, 3')
        a(f's_add_u32 s11, s11, s{sW}')
        a('s_lshl_b32 s11, s11, 7')
        a(f'v_lshlrev_b32 v{vT0}, 15, v{vLane}')
        a(f'v_add_u32 v{vT0}, s11, v{vT0}')
        a(f'buffer_load_dword v{vPF}, v{vT0}, {S(sPF)}, 0 offen')
        a(f'v_add_u32 v{vT0}, {64 << 15}, v{vT0}')
        a(f'buffer_load_dword v{vPF + 1}, v{vT0}, {S(sPF)}, 0 offen')
    a(f's_waitcnt vmcnt({NFIRST - 10 + 8 + NPF})')
    o0, o1 = S_OFF0, S_OFF0 + 1
    t = [OO + 2, OO + 3, OO + 4, OO + 5, OO + 6, OO + 7]
    a(f'v_and_b32 v{t[0]}, 0xffff, v{o0}')
    a(f'v_lshrrev_b32 v{t[1]}, 16, v{o0}')
    a(f'v_and_b32 v{t[2]}, 0xffff, v{o1}')
    a(f'v_lshrrev_b32 v{t[3]}, 16, v{o1}')
    a(f'v_sub_u32 v{t[2]}, v{t[2]}, v{t[0]}')
    a(f'v_sub_u32 v{t[3]}, v{t[3]}, v{t[1]}')
    a(f'v_add_u32 v{t[4]}, v{t[2]}, v{t[3]}')
    a(f'v_mov_b32 v{t[5]}, v{t[4]}')
    wave_scan_incl(a, t[5])
    a(f'v_readlane_b32 s{sCnt}, v{t[5]}, 63')
    a(f'v_sub_u32 v{t[5]}, v{t[5]}, v{t[4]}')
    a(f'v_mul_u32_u24 v{t[4]}, {2 * CH}, v{vLane}')
    a(f's_lshl_b32 s11, s{sB4}, 9')
    a(f'v_sub_u32 v{t[4]}, s11, v{t[4]}')
    a(f'v_add_u32 v{t[5]}, v{t[5]}, v{t[4]}')
    a(f'v_sub_u32 v{kD0}, v{t[5]}, v{t[0]}')
    a(f'v_add_u32 v{t[5]}, v{t[5]}, v{t[2]}')
    a(f'v_sub_u32 v{t[5]}, v{t[5]}, v{t[1]}')
    a(f'v_subrev_u32 v{kD1}, {CH}, v{t[5]}')
    a(f'v_lshlrev_b32 v{vT0}, 5, v{vLane}')
    a(f's_lshl_b32 s11, s{sB4}, 2')
    a(f'v_add_u32 v{vT0}, s11, v{vT0}')
    a(f'ds_write_b32 v{vT0}, v{kD0} offset:{L_DELTA}')
    a(f'ds_write_b32 v{vT0}, v{kD1} offset:{L_DELTA + 16}')
    a(f'v_mov_b32 v{vT0 + 1}, s{sCnt}')
    a(f'v_mov_b32 v{vT0 + 2}, s11')
    a(f'ds_write_b32 v{vT0 + 2}, v{vT0 + 1} offset:{L_CNT}')
    a(f's_lshl_b32 s11, s{sB4}, 9')
    a(f'v_lshrrev_b32 v{vT0}, 3, v{vLane}')
    a(f'v_add_u32 v{vT0}, s11, v{vT0}')
    a(f'v_lshlrev_b32 v{vASrc}, 1, v{vT0}')
    a(f'v_add_u32 v{vT0}, s11, v{vC}')
    a(f'v_lshlrev_b32 v{vAEi}, 2, v{vT0}')
    a(f'v_lshlrev_b32 v{vAOd}, 1, v{vT0}')
    a(f's_waitcnt vmcnt({8 + 8 + 1 + 8 + NPF}) lgkmcnt(0)')
    a('s_barrier')
    placement(a, 'a', NPF)
    more_check(a, 'a')
    a(f'v_mov_b32 v{vT0}, 0')
    a('s_waitcnt lgkmcnt(0)')
    a('s_barrier')
    a(f'ds_read_b128 {V(BP, 4)}, v{vT0} offset:{L_CNT}')
    a('s_waitcnt lgkmcnt(0)')
    a(f'v_max_u32 v{BP}, v{BP}, v{BP + 1}')
    a(f'v_max3_u32 v{BP}, v{BP}, v{BP + 2}, v{BP + 3}')
    a(f'v_readfirstlane_b32 s11, v{BP}')
    a(f's_add_u32 s11, s11, {CAP - 1}')
    a(f's_mov_b32 s12, {(1 << 32) // CAP + 1}')
    a(f's_mul_hi_u32 s{sRounds}, s11, s12')
    set_tiles(a)
    for i in range(32):
        a(f'v_mov_b32 v{DEN + i}, 0')

    a.label('L_pipe')
    idx_reads(a, 0)
    oad_read(a, vOA[0], 0)
    oad_read(a, vOA[1], 1)
    a('s_waitcnt lgkmcnt(2)')
    a(dma(0, 0))
    idx_reads(a, 1)
    a('s_waitcnt lgkmcnt(0)')
    a(dma(1, 1))
    idx_reads(a, 2)
    a(f's_cmp_lg_u32 s{sRound}, 0')
    a('s_cbranch_scc1 L_node_done')
    a(f'v_and_b32 v{vT0}, 15, v{vC}')
    a(f'v_xor_b32 v{vT0}, v{vT0}, v{vHH}')
    a(f'v_lshlrev_b32 v{vT0}, 4, v{vT0}')
    a(f'v_lshl_add_u32 v{vT0}, v{vC}, 8, v{vT0}')
    a(f'v_add_u32 v{vT0}, s{sXr}, v{vT0}')
    XA = [BP, BP + 4, HP, HP + 4, OO, OO + 4, SS[0], SS[0] + 4]
    for s in range(8):
        a(f'v_xor_b32 v{vT0 + 1}, {s << 5}, v{vT0}')
        a(f'ds_read_b128 {V(XA[s], 4)}, v{vT0 + 1}')
    for s in range(8):
        a(f's_waitcnt lgkmcnt({7 - s})')
        a(mfma(G[0], XA[s], WA + 4 * s, '0' if s == 0 else None))
    a(f'v_and_b32 v{vT0}, 0x13, v{vC}')
    a(f'v_and_b32 v{vT0 + 1}, 4, v{vC}')
    a(f'v_lshl_or_b32 v{vT0}, v{vT0 + 1}, 1, v{vT0}')
    a(f'v_and_b32 v{vT0 + 1}, 8, v{vC}')
    a(f'v_lshrrev_b32 v{vT0 + 1}, 1, v{vT0 + 1}')
    a(f'v_or_b32 v{vMu}, v{vT0}, v{vT0 + 1}')
    a(f'v_and_b32 v{vT0}, 15, v{vMu}')
    a(f'v_xor_b32 v{vT0}, v{vT0}, v{vHH}')
    a(f'v_lshlrev_b32 v{vT0}, 4, v{vT0}')
    a(f'v_lshl_add_u32 v{vT0}, v{vMu}, 8, v{vT0}')
    a(f'v_add_u32 v{vT0}, s{sXr}, v{vT0}')
    for s in range(8):
        a(f'v_xor_b32 v{vT0 + 1}, {s << 5}, v{vT0}')
        a(f'ds_read_b128 {V(XA[s], 4)}, v{vT0 + 1}')
    for s in range(8):
        a(f's_waitcnt lgkmcnt({7 - s})')
        a(mfma(UU, WU[s], XA[s], '0' if s == 0 else None))
    a(f's_mov_b32 s11, {NEG_LOG2E:#x}')
    for i in range(16):
        a(f'v_mul_f32 v{G[0] + i}, s11, v{G[0] + i}')
    for i in range(8):
        a(f'v_cvt_pk_bf16_f32 v{AP + i}, v{G[0] + 2 * i}, v{G[0] + 2 * i + 1}')
    a.label('L_node_done')
    a(f's_cmp_eq_u32 s{sTiles}, 0')
    a('s_cbranch_scc1 L_round_end')
    for i in range(4):
        a(f'v_mov_b32 v{SS[1] + 4 + i}, 0')
        a(f'v_mov_b32 v{EP + 4 + i}, 0')
        a(f'v_mov_b32 v{MP + 4 + i}, 0')
    a('s_waitcnt lgkmcnt(0)')
    a(f'v_add_u32 v{vOA[0]}, s{sOb}, v{vOA[0]}')
    a('s_waitcnt vmcnt(5)')
    a(operand_reads(0, 0, vOA[0]))
    for w, m in m1(0):
        if w:
            a(f's_waitcnt {w}')
        a(m)
    a(f's_mov_b32 s{sLeft}, s{sTiles}')
    a.label('L_loop')
    iteration(a, 0, opts)
    a(f's_sub_u32 s{sLeft}, s{sLeft}, 1')
    a(f's_cmp_eq_u32 s{sLeft}, 0')
    a('s_cbranch_scc1 L_exit0')
    iteration(a, 1, opts)
    a(f's_sub_u32 s{sLeft}, s{sLeft}, 1')
    a(f's_cmp_lg_u32 s{sLeft}, 0')
    a('s_cbranch_scc1 L_loop')
    a('s_nop 1')
    a(m2(1, 1))
    a('s_branch L_round_end')
    a.label('L_exit0')
    a('s_nop 1')
    a(m2(0, 1))
    a.label('L_round_end')
    a(f's_add_u32 s{sRound}, s{sRound}, 1')
    a(f's_cmp_lt_u32 s{sRound}, s{sRounds}')
    a('s_cbranch_scc1 L_next_round')

    a('s_waitcnt vmcnt(0) lgkmcnt(0)')
    a(f'v_and_b32 v{vT0}, 15, v{vMu}')
    a(f's_lshl_b32 s11, s{sQ}, 2')
    a(f'v_xor_b32 v{vT0}, s11, v{vT0}')
    a(f'v_lshlrev_b32 v{vT0}, 4, v{vT0}')
    a(f'v_lshl_add_u32 v{vT0}, v{vMu}, 8, v{vT0}')
    a(f'v_lshl_add_u32 v{vT0}, v{vHH}, 3, v{vT0}')
    a(f'v_add_u32 v{vT0}, s{sXr}, v{vT0}')
    for i in range(4):
        a(f'v_xor_b32 v{vT0 + 1}, {i << 4}, v{vT0}')
        a(f'ds_read_b64 {V(BP + 2 * i, 2)}, v{vT0 + 1}')
    a(f'v_cmp_gt_u32 vcc, s{sNBN}, v{vMu}')
    a(f'v_add_u32 v{vT0}, s{sNB0}, v{vMu}')
    a(f'v_lshlrev_b32 v{vT0}, 8, v{vT0}')
    a(f'v_lshl_add_u32 v{vT0}, v{vHH}, 4, v{vT0}')
    a(f's_lshl_b32 s11, s{sQ}, 6')
    a(f'v_add_u32 v{vT0}, s11, v{vT0}')
    a(f'v_bfrev_b32 v{vT0 + 1}, 1')
    a(f'v_cndmask_b32 v{vT0}, v{vT0 + 1}, v{vT0}, vcc')
    a(f's_mov_b32 s11, 0x358637bd')
    for i in range(16):
        a(f'v_add_f32 v{DEN + i}, s11, v{DEN + i}')
    for i in range(16):
        a(f'v_rcp_f32 v{DEN + i}, v{DEN + i}')
    for i in range(16):
        a(f'v_fma_f32 v{NUM + i}, v{NUM + i}, v{DEN + i}, v{UU + i}')
    for i in range(16):
        a(f'v_max_f32 v{NUM + i}, 0, v{NUM + i}')
    a('s_waitcnt lgkmcnt(0)')
    for i in range(8):
        a(f'v_lshlrev_b32 v{DEN + 2 * i}, 16, v{BP + i}')
        a(f'v_and_b32 v{DEN + 2 * i + 1}, 0xffff0000, v{BP + i}')
    for i in range(16):
        a(f'v_add_f32 v{NUM + i}, v{NUM + i}, v{DEN + i}')
    for i in range(8):
        a(f'v_cvt_pk_bf16_f32 v{EP + i}, v{NUM + 2 * i}, v{NUM + 2 * i + 1}')
    for p in range(2):
        a(f'v_permlane32_swap_b32 v{EP + 4 * p}, v{EP + 4 * p + 2}')
        a(f'v_permlane32_swap_b32 v{EP + 4 * p + 1}, v{EP + 4 * p + 3}')
    for p in range(2):
        a(f'buffer_store_dwordx4 {V(EP + 4 * p, 4)}, v{vT0}, {S(sOut)}, 0 offen offset:{32 * p}')
    a('s_endpgm')

    a.label('L_next_round')
    a('s_waitcnt vmcnt(0) lgkmcnt(0)')
    a('s_barrier')
    dummy_fill(a)
    a(f'v_subrev_u32 v{kD0}, {CAP}, v{kD0}')
    a(f'v_subrev_u32 v{kD1}, {CAP}, v{kD1}')
    a(f'v_lshlrev_b32 v{vT0}, 5, v{vLane}')
    a(f's_lshl_b32 s11, s{sB4}, 2')
    a(f'v_add_u32 v{vT0}, s11, v{vT0}')
    a(f'ds_write_b32 v{vT0}, v{kD0} offset:{L_DELTA}')
    a(f'ds_write_b32 v{vT0}, v{kD1} offset:{L_DELTA + 16}')
    a('s_waitcnt lgkmcnt(0)')
    a('s_barrier')
    a(f'v_and_b32 v{vL15}, 15, v{vLane}')
    a(f'v_mov_b32 v{vL15 + 1}, 0x20000000')
    for k in range(4):
        a(f'v_add_u32 v{vP[k]}, v{kS[k]}, v{vL15}')
    issue_rec_loads(a)
    placement(a, 'r', 0)
    more_check(a, 'r')
    a('s_waitcnt lgkmcnt(0)')
    a('s_barrier')
    set_tiles(a)
    a(f's_lshl_b32 s11, s{sB4}, 9')
    a(f'v_lshrrev_b32 v{vT0}, 3, v{vLane}')
    a(f'v_add_u32 v{vT0}, s11, v{vT0}')
    a(f'v_lshlrev_b32 v{vASrc}, 1, v{vT0}')
    a(f'v_add_u32 v{vT0}, s11, v{vC}')
    a(f'v_lshlrev_b32 v{vAEi}, 2, v{vT0}')
    a(f'v_lshlrev_b32 v{vAOd}, 1, v{vT0}')
    a('s_branch L_pipe')
    a.label('L_k2_exit')
    a('s_endpgm')
    return a
```

```python
import sys, os
sys.path.insert(0, os.path.dirname(os.path.abspath(__file__)))
from common import *
import k1
try:
    import k2
except ImportError:
    k2 = None

NAME = 'gather_scatter__edge_featured_mpnn_gatedgcn__graph'
HERE = os.path.dirname(os.path.abspath(__file__))
REF = os.path.join(HERE, '..', 'cdna_kernels', NAME + '.s.ref')


def header():
    lines = open(REF).read().split('\n')
    out = []
    for l in lines:
        if l.startswith('; Override launch') or l.startswith('; grid=ceil') or '@launch' in l or not l.startswith(';'):
            if not l.startswith(';'):
                break
            continue
        out.append(l)
    return out


def kd(name, vgpr, sgpr):
    return f'''.p2align 6
.amdhsa_kernel {name}
  .amdhsa_next_free_vgpr {vgpr}
  .amdhsa_next_free_sgpr {sgpr}
  .amdhsa_accum_offset {(vgpr + 3) // 4 * 4}
  .amdhsa_group_segment_fixed_size 0
  .amdhsa_kernarg_size 96
  .amdhsa_user_sgpr_count 2
  .amdhsa_user_sgpr_kernarg_segment_ptr 1
  .amdhsa_system_sgpr_workgroup_id_x 1
.end_amdhsa_kernel'''


def build(opts=None):
    opts = opts or {}
    a1 = k1.gen_k1(opts)
    t1 = a1.finalize()
    a2 = k2.gen_k2(opts)
    t2 = a2.finalize()
    h = header()
    h.append(f'; @launch kernel=gcn_prep_kernel grid=({k1.K1_END},1,1) block=(512,1,1) lds={k1.K1_LDS}')
    h.append(f'; @launch kernel=gcn_edge_kernel grid=({k2.K2_GRID},1,1) block=(512,1,1) lds={k2.K2_LDS}')
    s = '\n'.join(h) + '\n'
    s += '.amdgcn_target "amdgcn-amd-amdhsa--gfx950"\n.text\n'
    for name, t in (('gcn_prep_kernel', t1), ('gcn_edge_kernel', t2)):
        s += f'.globl {name}\n.p2align 8\n.type {name},@function\n{name}:\n{t}\n'
    s += '.section .rodata,"a"\n'
    s += kd('gcn_prep_kernel', k1.K1_VGPR, 80) + '\n'
    s += kd('gcn_edge_kernel', k2.K2_VGPR, 96) + '\n'
    return s, a1, a2


if __name__ == '__main__':
    out = sys.argv[1] if len(sys.argv) > 1 else os.path.join(HERE, '..', 'cdna_kernels', NAME + '.s')
    opts = dict(kv.split('=') for kv in sys.argv[2:])
    s, a1, a2 = build(opts)
    open(out, 'w').write(s)
    print('wrote', out, len(s), 'bytes', dict(a1.stats()), dict(a2.stats()))
```

```python
from asm import Asm
from common import *

K1_BIN0, K1_T10, K1_FR0, K1_END = 0, 128, 384, 386
K1_LDS = 57344

L_HIST = 0
L_WSUM = 2048
L_RECS = 2304
L_ES = 7424


STAMPS = 0


def st(a, i):
    if STAMPS:
        a('s_memrealtime s[70:71]')
        a('s_waitcnt lgkmcnt(0)')
        a(f'v_writelane_b32 v110, s70, {i}')


def k1_end(a):
    if STAMPS:
        a('s_mov_b64 exec, -1')
        st(a, 6)
        a('s_waitcnt vmcnt(0) lgkmcnt(0)')
        st(a, 7)
        a('v_writelane_b32 v110, s68, 0')
        srd(a, 72, S_WS, 1 << 20, off=33 << 20)
        a('s_lshl_b32 s11, s2, 3')
        a('s_add_u32 s11, s11, s3')
        a('s_lshl_b32 s11, s11, 5')
        a('v_lshl_add_u32 v4, v1, 2, s11')
        a('v_cmp_gt_u32 vcc, 8, v1')
        a('s_mov_b64 exec, vcc')
        a('buffer_store_dword v110, v4, s[72:75], 0 offen')
    a('s_endpgm')


def gen_bin(a):
    sDST, sSRC, sEA, sREC, sES, sOFF = 40, 44, 48, 52, 56, 60
    sC, sW = 2, 3
    vTid, vLane = 0, 1
    vI4, vI32 = 2, 3
    vD = [4, 5, 6]
    vS = [7, 8, 9]
    vE = [12, 20, 28]
    vB4 = [36, 37, 38]
    vRank = [39, 40, 41]
    vRec = [42, 43, 44]
    vT = [45, 46, 47, 48, 49]
    vOne, vCnt, vIncl, vExcl = 50, 51, 52, 53
    vPos = [54, 55, 56]
    sMask2 = 64

    st(a, 1)
    srd(a, sDST, S_DST, E * 4)
    srd(a, sSRC, S_SRC, E * 4)
    srd(a, sEA, S_EA, E * 32)
    a(f's_mul_i32 s4, s{sC}, {CH}')
    a(f'v_add_u32 v{vI4}, s4, v{vTid}')
    a(f'v_lshlrev_b32 v{vI32}, 5, v{vI4}')
    a(f'v_lshlrev_b32 v{vI4}, 2, v{vI4}')
    a('s_movk_i32 s5, 4096')
    a('s_movk_i32 s6, 16384')
    a('s_mov_b32 s7, 32768')
    for r in range(3):
        if r < 2:
            a(f'buffer_load_dword v{vD[r]}, v{vI4}, {S(sDST)}, 0 offen offset:{2048 * r}')
        else:
            a(f'buffer_load_dword v{vD[r]}, v{vI4}, {S(sDST)}, s5 offen')
    for r in range(3):
        if r < 2:
            a(f'buffer_load_dword v{vS[r]}, v{vI4}, {S(sSRC)}, 0 offen offset:{2048 * r}')
        else:
            a(f'buffer_load_dword v{vS[r]}, v{vI4}, {S(sSRC)}, s5 offen')
    for r in range(3):
        so = ['0', 's6', 's7'][r]
        a(f'buffer_load_dwordx4 {V(vE[r], 4)}, v{vI32}, {S(sEA)}, {so} offen')
        a(f'buffer_load_dwordx4 {V(vE[r] + 4, 4)}, v{vI32}, {S(sEA)}, {so} offen offset:16')
    a(f'v_lshlrev_b32 v{vT[0]}, 2, v{vTid}')
    a(f'v_mov_b32 v{vT[1]}, 0')
    a(f'ds_write_b32 v{vT[0]}, v{vT[1]} offset:{L_HIST}')
    a(f'ds_write_b32 v{vT[1]}, v{vT[1]} offset:{L_WSUM}')
    a(f'v_mov_b32 v{vOne}, 1')
    srd(a, sREC, S_WS, E * 4, off=WS_REC)
    srd(a, sES, S_WS, E * 32, off=WS_ES)
    srd(a, sOFF, S_WS, OFF_BYTES, off=WS_OFF)
    a(f's_movk_i32 s8, {CH - 1024}')
    a(f'v_cmp_gt_u32 {S(sMask2, 2)}, s8, v{vTid}')
    a(f's_mov_b32 s9, {BUCKET_MAGIC}')
    a('s_movk_i32 s10, 625')
    a('s_waitcnt lgkmcnt(0)')
    a('s_barrier')
    for r in range(3):
        a(f's_waitcnt vmcnt({11 - r})')
        a(f'v_mul_hi_u32 v{vT[0]}, v{vD[r]}, s9')
        a(f'v_mad_u32_u24 v{vT[1]}, v{vT[0]}, s10, 31')
        a(f'v_lshrrev_b32 v{vT[1]}, 5, v{vT[1]}')
        a(f'v_sub_u32 v{vT[1]}, v{vD[r]}, v{vT[1]}')
        a(f'v_lshlrev_b32 v{vB4[r]}, 2, v{vT[0]}')
        if r == 2:
            a(f's_mov_b64 exec, {S(sMask2, 2)}')
        a(f'ds_add_rtn_u32 v{vRank[r]}, v{vB4[r]}, v{vOne} offset:{L_HIST}')
        if r == 2:
            a('s_mov_b64 exec, -1')
        a(f'v_and_b32 v{vT[2]}, 0x13, v{vT[1]}')
        a(f'v_lshlrev_b32 v{vT[2]}, 1, v{vT[2]}')
        a(f'v_and_b32 v{vT[3]}, 4, v{vT[1]}')
        a(f'v_lshl_or_b32 v{vT[2]}, v{vT[3]}, 2, v{vT[2]}')
        a(f'v_and_or_b32 v{vT[2]}, v{vT[1]}, 8, v{vT[2]}')
        a(f'v_and_b32 v{vT[0]}, 3, v{vT[0]}')
        a(f'v_lshlrev_b32 v{vT[0]}, 22, v{vT[0]}')
        a(f'v_lshl_or_b32 v{vRec[r]}, v{vT[2]}, 16, v{vT[0]}')
    for r in range(3):
        a(f's_waitcnt vmcnt({8 - r})')
        a(f'v_or_b32 v{vRec[r]}, v{vRec[r]}, v{vS[r]}')
    a('s_waitcnt lgkmcnt(0)')
    st(a, 2)
    a('s_barrier')
    a(f'v_lshlrev_b32 v{vT[0]}, 2, v{vTid}')
    a(f'ds_read_b32 v{vCnt}, v{vT[0]} offset:{L_HIST}')
    a('s_waitcnt lgkmcnt(0)')
    a(f'v_mov_b32 v{vIncl}, v{vCnt}')
    wave_scan_incl(a, vIncl)
    a(f'v_readlane_b32 s11, v{vIncl}, 63')
    a(f's_lshl_b32 s12, s{sW}, 2')
    a(f'v_mov_b32 v{vT[1]}, s11')
    a(f'v_mov_b32 v{vT[2]}, s12')
    a(f'ds_write_b32 v{vT[2]}, v{vT[1]} offset:{L_WSUM + 4}')
    a('s_waitcnt lgkmcnt(0)')
    a('s_barrier')
    a(f'v_and_b32 v{vT[1]}, 7, v{vLane}')
    a(f'v_lshlrev_b32 v{vT[1]}, 2, v{vT[1]}')
    a(f'ds_read_b32 v{vT[2]}, v{vT[1]} offset:{L_WSUM}')
    a('s_waitcnt lgkmcnt(0)')
    for sh in (1, 2, 4):
        a(f'v_add_u32_dpp v{vT[2]}, v{vT[2]}, v{vT[2]} row_shr:{sh} row_mask:0xf bank_mask:0xf')
    a(f'v_readlane_b32 s11, v{vT[2]}, s{sW}')
    a(f'v_sub_u32 v{vExcl}, v{vIncl}, v{vCnt}')
    a(f'v_add_u32 v{vExcl}, s11, v{vExcl}')
    a(f'ds_write_b32 v{vT[0]}, v{vExcl} offset:{L_HIST}')
    a('s_waitcnt lgkmcnt(0)')
    a('s_barrier')
    st(a, 3)
    for r in range(3):
        a(f'ds_read_b32 v{vPos[r]}, v{vB4[r]} offset:{L_HIST}')
    a('s_waitcnt vmcnt(0) lgkmcnt(0)')
    for r in range(3):
        a(f'v_add_u32 v{vPos[r]}, v{vPos[r]}, v{vRank[r]}')
        a(f'v_lshlrev_b32 v{vT[1]}, 2, v{vPos[r]}')
        a(f'v_lshlrev_b32 v{vT[2]}, 5, v{vPos[r]}')
        if r == 2:
            a(f's_mov_b64 exec, {S(sMask2, 2)}')
        a(f'ds_write_b32 v{vT[1]}, v{vRec[r]} offset:{L_RECS}')
        a(f'ds_write_b128 v{vT[2]}, {V(vE[r], 4)} offset:{L_ES}')
        a(f'ds_write_b128 v{vT[2]}, {V(vE[r] + 4, 4)} offset:{L_ES + 16}')
        if r == 2:
            a('s_mov_b64 exec, -1')
    st(a, 4)
    a(f'v_lshlrev_b32 v{vT[3]}, 8, v{vTid}')
    a(f's_lshl_b32 s12, s{sC}, 1')
    a(f'v_add_u32 v{vT[3]}, s12, v{vT[3]}')
    a(f'buffer_store_short v{vExcl}, v{vT[3]}, {S(sOFF)}, 0 offen')
    a(f'v_mov_b32 v{vT[4]}, {CH}')
    a(f'v_add_u32 v{vT[3]}, 256, v{vT[3]}')
    a(f's_movk_i32 s13, 511')
    a(f'v_cmp_eq_u32 vcc, s13, v{vTid}')
    a('v_bfrev_b32 v57, 1')
    a(f'v_cndmask_b32 v{vT[3]}, v57, v{vT[3]}, vcc')
    a(f'buffer_store_short v{vT[4]}, v{vT[3]}, {S(sOFF)}, 0 offen')
    a('s_waitcnt lgkmcnt(0)')
    a('s_barrier')
    st(a, 5)
    a(f'v_lshlrev_b32 v{vT[0]}, 2, v{vTid}')
    a(f'v_lshlrev_b32 v{vT[1]}, 4, v{vTid}')
    for r in range(3):
        a(f'ds_read_b32 v{vD[r]}, v{vT[0]} offset:{L_RECS + 2048 * r}')
    for r in range(5):
        a(f'ds_read_b128 {V(12 + 4 * r, 4)}, v{vT[1]} offset:{L_ES + 8192 * r}')
    a(f's_mul_i32 s4, s{sC}, {CH * 4}')
    a(f's_mul_i32 s14, s{sC}, {CH * 32}')
    a(f'v_add_u32 v{vT[0]}, s4, v{vT[0]}')
    a(f'v_add_u32 v{vT[1]}, s14, v{vT[1]}')
    for r in range(3):
        a(f's_waitcnt lgkmcnt({7 - r})')
        if r < 2:
            a(f'buffer_store_dword v{vD[r]}, v{vT[0]}, {S(sREC)}, 0 offen offset:{2048 * r}')
        else:
            a(f's_mov_b64 exec, {S(sMask2, 2)}')
            a(f'buffer_store_dword v{vD[r]}, v{vT[0]}, {S(sREC)}, s5 offen')
            a('s_mov_b64 exec, -1')
    a('s_movk_i32 s4, 8192')
    a('s_movk_i32 s14, 24576')
    a(f's_movk_i32 s8, {CH * 2 - 2048}')
    a(f'v_cmp_gt_u32 vcc, s8, v{vTid}')
    for r in range(5):
        so = ['0', 's4', 's6', 's14', 's7'][r]
        a(f's_waitcnt lgkmcnt({4 - r})')
        if r == 4:
            a('s_mov_b64 exec, vcc')
        a(f'buffer_store_dwordx4 {V(12 + 4 * r, 4)}, v{vT[1]}, {S(sES)}, {so} offen')
    k1_end(a)


def gen_t1(a):
    sX, sWB, sWV, sT = 40, 44, 48, 52
    sW, sG, sH, sN0, sNG = 3, 4, 5, 6, 7
    vTid, vLane = 0, 1
    vW = 8
    vXo = 40
    vAcc = 72
    vP = 88
    vT = [96, 97, 98, 99, 100, 101]
    vAW, vAX, vSt = 102, 103, 104
    vC, vHH = 105, 106

    st(a, 1)
    srd(a, sX, S_X, N * 256)
    srd(a, sWB, S_WB, 128 * 256)
    srd(a, sWV, S_WV, 128 * 256)
    srd(a, sT, S_WS, 4 * TQ, off=WS_TBL)
    a(f's_sub_u32 s8, s2, {K1_T10}')
    a(f's_lshr_b32 s{sG}, s8, 1')
    a(f's_and_b32 s{sH}, s8, 1')
    a(f's_mul_i32 s{sN0}, s{sG}, 2500')
    a(f's_add_u32 s9, s{sN0}, 2531')
    a(f's_add_u32 s{sN0}, s{sN0}, 31')
    a(f's_lshr_b32 s{sN0}, s{sN0}, 5')
    a('s_lshr_b32 s9, s9, 5')
    a(f's_sub_u32 s{sNG}, s9, s{sN0}')
    a(f'v_lshrrev_b32 v{vT[0]}, 3, v{vLane}')
    a(f'v_and_b32 v{vT[1]}, 7, v{vLane}')
    a(f'v_lshrrev_b32 v{vT[2]}, 2, v{vLane}')
    a(f'v_and_b32 v{vT[2]}, 4, v{vT[2]}')
    a(f'v_xor_b32 v{vT[1]}, v{vT[1]}, v{vT[2]}')
    a(f'v_lshlrev_b32 v{vT[1]}, 4, v{vT[1]}')
    a(f'v_lshl_add_u32 v{vT[1]}, v{vT[0]}, 8, v{vT[1]}')
    a(f's_and_b32 s8, s{sW}, 3')
    a('s_lshl_b32 s9, s8, 13')
    a(f's_lshl_b32 s10, s{sH}, 7')
    a('s_add_u32 s9, s9, s10')
    a(f'v_add_u32 v{vT[1]}, s9, v{vT[1]}')
    a(f's_lshl_b32 s11, s{sW}, 12')
    a(f's_cmp_ge_u32 s{sW}, 4')
    a(f's_cselect_b32 s56, s{sWV}, s{sWB}')
    a(f's_cselect_b32 s57, s{sWV + 1}, s{sWB + 1}')
    a(f's_mov_b32 s58, s{sWB + 2}')
    a(f's_mov_b32 s59, {SRD3:#x}')
    for j in range(4):
        a(f's_add_u32 m0, s11, {j * 1024}')
        a(f's_movk_i32 s12, {j * 2048}')
        a(f'buffer_load_dwordx4 v{vT[1]}, s[56:59], s12 offen lds')
    a(f'v_lshrrev_b32 v{vT[0]}, 4, v{vLane}')
    a(f's_mul_i32 s12, s{sW}, 12')
    a(f'v_add_u32 v{vT[0]}, s12, v{vT[0]}')
    a(f'v_and_b32 v{vT[2]}, 15, v{vLane}')
    a(f's_mul_i32 s13, s{sW}, 3072')
    a(f's_add_u32 s13, s13, 32768')
    for j in range(3):
        a(f'v_add_u32 v{vT[3]}, {4 * j}, v{vT[0]}')
        a(f'v_and_b32 v{vT[4]}, 15, v{vT[3]}')
        a(f'v_xor_b32 v{vT[4]}, v{vT[4]}, v{vT[2]}')
        a(f'v_add_u32 v{vT[3]}, s{sN0}, v{vT[3]}')
        a(f'v_lshlrev_b32 v{vT[3]}, 8, v{vT[3]}')
        a(f'v_lshl_add_u32 v{vT[3]}, v{vT[4]}, 4, v{vT[3]}')
        a(f's_add_u32 m0, s13, {j * 1024}')
        a('s_nop 0')
        a(f'buffer_load_dwordx4 v{vT[3]}, {S(sX)}, 0 offen lds')
    a('v_bfrev_b32 v107, 1')
    a(f'v_and_b32 v{vC}, 31, v{vLane}')
    a(f'v_lshrrev_b32 v{vHH}, 5, v{vLane}')
    a(f's_and_b32 s8, s{sW}, 1')
    a(f's_bfe_u32 s9, s{sW}, 0x10001')
    a(f'v_bfe_u32 v{vT[0]}, v{vLane}, 2, 2')
    a(f'v_lshl_add_u32 v{vT[1]}, v{vHH}, 3, v{vT[0]}')
    a(f'v_lshlrev_b32 v{vT[1]}, 7, v{vT[1]}')
    a(f'v_bfe_u32 v{vT[2]}, v{vLane}, 4, 1')
    a(f'v_lshlrev_b32 v{vT[2]}, 1, v{vT[2]}')
    a(f'v_bfe_u32 v{vT[3]}, v{vLane}, 1, 1')
    a(f'v_or_b32 v{vT[2]}, v{vT[2]}, v{vT[3]}')
    a('s_lshl_b32 s10, s9, 2')
    a(f'v_or_b32 v{vT[2]}, s10, v{vT[2]}')
    a(f'v_lshrrev_b32 v{vT[3]}, 1, v{vT[0]}')
    a(f'v_lshlrev_b32 v{vT[3]}, 2, v{vT[3]}')
    a(f'v_xor_b32 v{vT[2]}, v{vT[2]}, v{vT[3]}')
    a(f'v_lshl_add_u32 v{vT[1]}, v{vT[2]}, 4, v{vT[1]}')
    a(f'v_and_b32 v{vT[3]}, 1, v{vLane}')
    a(f'v_lshl_add_u32 v{vT[1]}, v{vT[3]}, 3, v{vT[1]}')
    a('s_lshl_b32 s10, s8, 14')
    a(f'v_add_u32 v{vAW}, s10, v{vT[1]}')
    a(f'v_and_b32 v{vT[0]}, 15, v{vC}')
    a(f'v_xor_b32 v{vT[0]}, v{vT[0]}, v{vHH}')
    a(f'v_lshlrev_b32 v{vT[0]}, 4, v{vT[0]}')
    a(f'v_lshl_add_u32 v{vT[0]}, v{vC}, 8, v{vT[0]}')
    a(f's_lshr_b32 s10, s{sW}, 2')
    a('s_lshl_b32 s14, s10, 6')
    a('s_lshl_b32 s10, s10, 14')
    a('s_add_u32 s10, s10, 32768')
    a(f'v_add_u32 v{vAX}, s10, v{vT[0]}')
    a(f's_lshl_b32 s10, s{sH}, 1')
    a('s_add_u32 s10, s10, s9')
    a(f's_mul_i32 s10, s10, {TQ}')
    a('s_lshl_b32 s11, s8, 6')
    a('s_add_u32 s10, s10, s11')
    a(f's_add_u32 s11, s{sN0}, s14')
    a('s_lshl_b32 s11, s11, 7')
    a('s_add_u32 s10, s10, s11')
    a(f'v_lshlrev_b32 v{vSt}, 7, v{vC}')
    a(f'v_lshl_add_u32 v{vSt}, v{vHH}, 4, v{vSt}')
    a(f'v_add_u32 v{vSt}, s10, v{vSt}')
    a('s_cmp_eq_u32 s8, 0')
    a(f's_cselect_b32 s15, {NEG_LOG2E:#x}, 1.0')
    st(a, 2)
    a('s_waitcnt vmcnt(0)')
    st(a, 3)
    a('s_barrier')
    st(a, 4)

    def tile(first, row_off, lds_off):
        for s in range(8):
            if first:
                a(f'ds_read_b64_tr_b16 {V(vW + 4 * s, 2)}, v{vAW} offset:{s * 2048}')
                a(f'ds_read_b64_tr_b16 {V(vW + 4 * s + 2, 2)}, v{vAW} offset:{s * 2048 + 512}')
            a(f'v_xor_b32 v{vT[0]}, {s << 5}, v{vAX}')
            a(f'ds_read_b128 {V(vXo + 4 * s, 4)}, v{vT[0]} offset:{lds_off}')
            n = 3 if first else 1
            if s >= 3:
                k = s - 3
                a(f's_waitcnt lgkmcnt({3 * n})')
                a(mfma(vAcc, vW + 4 * k, vXo + 4 * k, '0' if k == 0 else None))
        for k in range(5, 8):
            n = 3 if first else 1
            a(f's_waitcnt lgkmcnt({(7 - k) * n})')
            a(mfma(vAcc, vW + 4 * k, vXo + 4 * k))
        a(f'v_add_u32 v{vT[1]}, s14, v{vC}')
        if row_off:
            a(f'v_add_u32 v{vT[1]}, {row_off}, v{vT[1]}')
        a(f'v_cmp_gt_u32 vcc, s{sNG}, v{vT[1]}')
        a(f'v_add_u32 v{vT[2]}, {row_off * 128}, v{vSt}')
        a(f'v_cndmask_b32 v{vT[2]}, v107, v{vT[2]}, vcc')
        for i in range(16):
            a(f'v_mul_f32 v{vAcc + i}, s15, v{vAcc + i}')
        for i in range(8):
            a(f'v_cvt_pk_bf16_f32 v{vP + i}, v{vAcc + 2 * i}, v{vAcc + 2 * i + 1}')
        for p in range(2):
            a(f'v_permlane32_swap_b32 v{vP + 4 * p}, v{vP + 4 * p + 2}')
            a(f'v_permlane32_swap_b32 v{vP + 4 * p + 1}, v{vP + 4 * p + 3}')
        for p in range(2):
            a(f'buffer_store_dwordx4 {V(vP + 4 * p, 4)}, v{vT[2]}, {S(sT)}, 0 offen offset:{32 * p}')

    tile(True, 0, 0)
    st(a, 5)
    a(f's_cmp_ge_u32 s{sW}, 4')
    a('s_cbranch_scc1 L_t1_done')
    tile(False, 32, 8192)
    a.label('L_t1_done')
    k1_end(a)


def gen_frag(a):
    sWm, sWC, sF = 40, 44, 48
    sW = 3
    vTid, vLane = 0, 1
    vT = [2, 3, 4, 5, 6, 7]
    vR = 8
    vA = 30
    a(f's_cmp_eq_u32 s2, {K1_FR0}')
    a(f's_cselect_b32 s{sWm}, s{S_WA}, s{S_WU}')
    a(f's_cselect_b32 s{sWm + 1}, s{S_WA + 1}, s{S_WU + 1}')
    a(f's_and_b32 s{sWm + 1}, s{sWm + 1}, 0xffff')
    a(f's_mov_b32 s{sWm + 2}, {128 * 256}')
    a(f's_mov_b32 s{sWm + 3}, {SRD3:#x}')
    srd(a, sWC, S_WC, 16 * 256)
    srd(a, sF, S_WS, WS_END - WS_FRA, off=WS_FRA)
    a(f'v_lshrrev_b32 v{vT[0]}, 4, v{vLane}')
    a(f'v_and_b32 v{vT[1]}, 15, v{vLane}')
    a(f'v_lshlrev_b32 v{vT[2]}, 2, v{vT[0]}')
    a(f'v_xor_b32 v{vT[1]}, v{vT[1]}, v{vT[2]}')
    a(f'v_lshlrev_b32 v{vT[1]}, 4, v{vT[1]}')
    a(f'v_lshl_add_u32 v{vT[1]}, v{vT[0]}, 8, v{vT[1]}')
    a(f's_lshl_b32 s8, s{sW}, 12')
    for j in range(4):
        a(f's_add_u32 m0, s8, {j * 1024}')
        a(f's_add_u32 s9, s8, {j * 1024}')
        a(f'buffer_load_dwordx4 v{vT[1]}, {S(sWm)}, s9 offen lds')
    a(f's_and_b32 s10, s{sW}, 3')
    a('s_lshl_b32 s9, s10, 10')
    a('s_add_u32 m0, s9, 32768')
    a('s_nop 0')
    a(f'buffer_load_dwordx4 v{vT[1]}, {S(sWC)}, s9 offen lds')
    a(f'v_lshrrev_b32 v{vT[0]}, 5, v{vLane}')
    a(f'v_bfe_u32 v{vT[2]}, v{vLane}, 2, 2')
    a(f'v_lshl_add_u32 v{vT[3]}, v{vT[0]}, 3, v{vT[2]}')
    a(f'v_lshlrev_b32 v{vT[3]}, 8, v{vT[3]}')
    a(f'v_bfe_u32 v{vT[4]}, v{vLane}, 4, 1')
    a(f'v_lshlrev_b32 v{vT[4]}, 1, v{vT[4]}')
    a(f'v_bfe_u32 v{vT[5]}, v{vLane}, 1, 1')
    a(f'v_or_b32 v{vT[4]}, v{vT[4]}, v{vT[5]}')
    a('s_lshl_b32 s11, s10, 2')
    a(f'v_or_b32 v{vT[4]}, s11, v{vT[4]}')
    a(f'v_lshlrev_b32 v{vT[2]}, 2, v{vT[2]}')
    a(f'v_xor_b32 v{vT[4]}, v{vT[4]}, v{vT[2]}')
    a(f'v_lshl_add_u32 v{vT[3]}, v{vT[4]}, 4, v{vT[3]}')
    a(f'v_and_b32 v{vT[5]}, 1, v{vLane}')
    a(f'v_lshl_add_u32 v{vT[3]}, v{vT[5]}, 3, v{vT[3]}')
    a(f's_lshr_b32 s11, s{sW}, 2')
    a('s_lshl_b32 s12, s11, 14')
    a(f'v_add_u32 v{vA}, s12, v{vT[3]}')
    a(f's_cmp_eq_u32 s2, {K1_FR0}')
    a(f's_cselect_b32 s12, 0, {WS_FRU - WS_FRA}')
    a('s_lshl_b32 s13, s10, 13')
    a('s_add_u32 s12, s12, s13')
    a('s_lshl_b32 s13, s11, 12')
    a('s_add_u32 s12, s12, s13')
    a(f'v_lshlrev_b32 v{vT[0]}, 4, v{vLane}')
    a(f'v_add_u32 v{vT[1]}, s12, v{vT[0]}')
    a('s_waitcnt vmcnt(0)')
    a('s_barrier')
    for s in range(4):
        a(f'ds_read_b64_tr_b16 {V(vR + 4 * s, 2)}, v{vA} offset:{s * 4096}')
        a(f'ds_read_b64_tr_b16 {V(vR + 4 * s + 2, 2)}, v{vA} offset:{s * 4096 + 1024}')
    a(f'ds_read_b64_tr_b16 {V(24, 2)}, v{vT[3]} offset:32768')
    a(f'ds_read_b64_tr_b16 {V(26, 2)}, v{vT[3]} offset:{32768 + 1024}')
    for s in range(4):
        a(f's_waitcnt lgkmcnt({8 - 2 * s})')
        a(f'buffer_store_dwordx4 {V(vR + 4 * s, 4)}, v{vT[1]}, {S(sF)}, 0 offen offset:{s * 1024}')
    a(f's_cmp_eq_u32 s2, {K1_FR0}')
    a('s_cbranch_scc0 L_fr_done')
    a(f's_cmp_ge_u32 s{sW}, 4')
    a('s_cbranch_scc1 L_fr_done')
    a('s_waitcnt lgkmcnt(0)')
    a(f's_mov_b32 s12, {NEG_LOG2E:#x}')
    for i in range(4):
        a(f'v_lshlrev_b32 v{32 + 2 * i}, 16, v{24 + i}')
        a(f'v_and_b32 v{33 + 2 * i}, 0xffff0000, v{24 + i}')
    for i in range(8):
        a(f'v_mul_f32 v{32 + i}, s12, v{32 + i}')
    for i in range(4):
        a(f'v_cvt_pk_bf16_f32 v{24 + i}, v{32 + 2 * i}, v{33 + 2 * i}')
    a('s_lshl_b32 s13, s10, 10')
    a(f's_add_u32 s13, s13, {WS_FRC - WS_FRA}')
    a(f'v_add_u32 v{vT[0]}, s13, v{vT[0]}')
    a(f'buffer_store_dwordx4 {V(24, 4)}, v{vT[0]}, {S(sF)}, 0 offen')
    a.label('L_fr_done')
    k1_end(a)


def gen_k1(opts=None):
    opts = opts or {}
    a = Asm()
    global STAMPS
    STAMPS = int(opts.get('stamps', 0))
    a(f's_cmp_ge_u32 s2, {K1_END}')
    a('s_cbranch_scc1 L_k1_exit')
    if STAMPS:
        a('s_memrealtime s[68:69]')
    load_kernargs(a)
    a('v_and_b32 v1, 63, v0')
    a('v_lshrrev_b32 v2, 6, v0')
    a('v_readfirstlane_b32 s3, v2')
    a('s_waitcnt lgkmcnt(0)')
    a(f's_cmp_ge_u32 s2, {K1_FR0}')
    a('s_cbranch_scc1 L_k1_frag')
    a(f's_cmp_ge_u32 s2, {K1_T10}')
    a('s_cbranch_scc1 L_k1_t1')
    gen_bin(a)
    a.label('L_k1_t1')
    gen_t1(a)
    a.label('L_k1_frag')
    gen_frag(a)
    a.label('L_k1_exit')
    a('s_endpgm')
    return a
K1_VGPR = 112
```

```python
from asm import Asm
from common import *

K2_GRID = 256
CAP = 416
CAPP = 512

L_EIDX = 0
L_SRC = 8192
L_OAD = 12288
L_DELTA = 16384
L_CNT = 18432
L_O = 18560
O_STRIDE = 2176
L_RING = 36864
L_XR = L_RING + 8 * 8192
K2_LDS = L_XR + 4 * 8192

sW, sG, sH, sB4, sQ, sB, sNB0, sNBN = 3, 4, 5, 6, 7, 8, 9, 10
sX, sT, sE, sR, sO, sF, sOut = 40, 44, 48, 52, 56, 60, 64
sTiles, sCnt, sRound, sRounds, sRing, sOb, sXr, sLeft = 68, 69, 70, 71, 72, 73, 74, 75
sM512, s7C0, sCAP, sPF = 76, 77, 78, 80
sTmp = 11

vLane, vC, vHH = 1, 2, 3
vASrc, vAEi, vAOd = 4, 5, 6
vO0a, vO1a, vOTa, vOTb, vRB, vRH = 7, 8, 9, 10, 11, 12
vOne16, vZero = 13, 14
vOA = [15, 16]
vT0 = 17
vEI = 20
vIx = 22
vPF = 30
DEN, NUM = 32, 48
G = [64, 80]
H = [96, 112]
EP, MP = 128, 136
AP, WC = 144, 152
I0, I1 = 156, 160
BP, HP, OO = 164, 172, 180
SS = [188, 196]
EE = [204, 208]
UU = 212
K2_VGPR = 228

vKeep = list(range(228, 241))
K2_VGPR = 242
kS = vKeep[0:4]
kEnd = vKeep[4:8]
kD0, kD1, kCb, kDc = vKeep[8:12]
vMu = vKeep[12]
vRec = [G[0] + i for i in range(8)]
vEi = [G[0] + 8 + i for i in range(8)]
vDl = [BP + i for i in range(8)]
vB4r = [HP + i for i in range(8)]
vP = [SS[0] + i for i in range(4)]
vL15 = SS[0] + 4
S_OFF0 = OO
WA = H[0]
WU = [G[1] + 4 * i for i in range(4)] + [EP, EP + 4, MP, MP + 4]


def onehot_pairs(a, dst, base_vals, vt, hmul):
    a(f'v_mul_u32_u24 v{vt}, {hmul}, v{vHH}')
    a(f'v_sub_u32 v{vt}, v{vC}, v{vt}')
    for p, b in enumerate(base_vals):
        a(f'v_subrev_u32 v{vt + 1}, {b}, v{vt}')
        a(f'v_lshlrev_b32 v{vt + 2}, 4, v{vt + 1}')
        a(f'v_lshlrev_b32 v{vt + 2}, v{vt + 2}, v{vOne16}')
        a(f'v_cmp_gt_u32 vcc, 2, v{vt + 1}')
        a(f'v_cndmask_b32 v{dst + p}, v{vZero}, v{vt + 2}, vcc')


def dummy_fill(a):
    a(f'v_lshlrev_b32 v{vT0}, 4, v0')
    a(f'v_mov_b32 v{BP}, -1')
    a(f'v_mov_b32 v{BP + 1}, -1')
    a(f'v_mov_b32 v{BP + 2}, -1')
    a(f'v_mov_b32 v{BP + 3}, -1')
    a(f'ds_write_b128 v{vT0}, {V(BP, 4)} offset:{L_EIDX}')
    a(f'v_lshlrev_b32 v{vT0 + 1}, 3, v0')
    a(f'ds_write_b64 v{vT0 + 1}, {V(BP, 2)} offset:{L_SRC}')
    a(f'v_mov_b32 v{BP + 4}, 0x08000800')
    a(f'v_mov_b32 v{BP + 5}, 0x08000800')
    a(f'ds_write_b64 v{vT0 + 1}, {V(BP + 4, 2)} offset:{L_OAD}')


def issue_rec_loads(a):
    for u in range(2):
        for k in range(4):
            i = 4 * u + k
            if u:
                a(f'v_add_u32 v{vT0}, 16, v{vP[k]}')
                src = vT0
            else:
                src = vP[k]
            a(f'v_cmp_lt_u32 vcc, v{src}, v{kEnd[k]}')
            a(f'v_add_u32 v{vEi[i]}, v{src}, v{kCb}')
            if k:
                a(f'v_add_u32 v{vEi[i]}, {k * 4 * CH}, v{vEi[i]}')
            a(f'v_cndmask_b32 v{vEi[i]}, v{vL15 + 1}, v{vEi[i]}, vcc')
            a(f'v_lshlrev_b32 v{vT0 + 1}, 2, v{vEi[i]}')
            a(f'buffer_load_dword v{vRec[i]}, v{vT0 + 1}, {S(sR)}, 0 offen')


def placement(a, tag, vm):
    a(f's_waitcnt vmcnt({vm})')
    for i in range(8):
        k = i & 3
        a(f'v_bfe_u32 v{vB4r[i]}, v{vRec[i]}, 22, 2')
        a(f'v_lshl_add_u32 v{vT0}, v{vB4r[i]}, 2, v{kDc}')
        a(f'ds_read_b32 v{vDl[i]}, v{vT0} offset:{L_DELTA + 64 * k}')
    a('s_waitcnt lgkmcnt(0)')
    for i in range(8):
        lp = vDl[i]
        a(f'v_add_u32 v{lp}, v{vEi[i]}, v{lp}')
        a(f'v_mad_i32_i24 v{vT0}, v{vB4r[i]}, s{sM512}, v{lp}')
        a(f'v_cmp_gt_u32 vcc, s{sCAP}, v{vT0}')
        if i >= 4:
            a(f's_cbranch_vccz L_pl_{tag}_{i}')
        a(f'v_lshlrev_b32 v{vT0}, 2, v{lp}')
        a(f'v_lshlrev_b32 v{vT0 + 1}, 1, v{lp}')
        a(f'v_bfe_u32 v{vT0 + 2}, v{vRec[i]}, 16, 6')
        a(f'v_bitop3_b32 v{vT0 + 2}, v{vT0 + 2}, v{vT0}, 48 bitop3:0x78')
        a(f'v_lshlrev_b32 v{lp}, 4, v{vT0}')
        a(f'v_and_or_b32 v{vT0 + 2}, v{lp}, s{s7C0}, v{vT0 + 2}')
        a('s_mov_b64 exec, vcc')
        a(f'ds_write_b32 v{vT0}, v{vEi[i]} offset:{L_EIDX}')
        a(f'ds_write_b16 v{vT0 + 1}, v{vRec[i]} offset:{L_SRC}')
        a(f'ds_write_b16 v{vT0 + 1}, v{vT0 + 2} offset:{L_OAD}')
        a('s_mov_b64 exec, -1')
        if i >= 4:
            a.label(f'L_pl_{tag}_{i}')


def more_check(a, tag):
    a.label(f'L_more_{tag}')
    for k in range(4):
        a(f'v_add_u32 v{vP[k]}, 32, v{vP[k]}')
    a(f'v_cmp_lt_u32 s[12:13], v{vP[0]}, v{kEnd[0]}')
    a(f'v_cmp_lt_u32 s[14:15], v{vP[1]}, v{kEnd[1]}')
    a('s_or_b64 s[12:13], s[12:13], s[14:15]')
    a(f'v_cmp_lt_u32 s[14:15], v{vP[2]}, v{kEnd[2]}')
    a('s_or_b64 s[12:13], s[12:13], s[14:15]')
    a(f'v_cmp_lt_u32 s[14:15], v{vP[3]}, v{kEnd[3]}')
    a('s_or_b64 s[12:13], s[12:13], s[14:15]')
    a('s_cmp_eq_u64 s[12:13], 0')
    a(f's_cbranch_scc1 L_placed_{tag}')
    issue_rec_loads(a)
    placement(a, tag + 'x', 0)
    a(f's_branch L_more_{tag}')
    a.label(f'L_placed_{tag}')


def set_tiles(a):
    a(f's_mul_i32 s11, s{sRound}, {CAP}')
    a(f's_sub_i32 s11, s{sCnt}, s11')
    a('s_max_i32 s11, s11, 0')
    a(f's_min_i32 s11, s11, {CAP}')
    a('s_add_u32 s11, s11, 31')
    a(f's_lshr_b32 s{sTiles}, s11, 5')


def idx_reads(a, tile_off):
    for j in range(4):
        a(f'ds_read_u16 v{vIx + 2 * j}, v{vASrc} offset:{L_SRC + tile_off * 64 + j * 16}')
    a(f'ds_read_b32 v{vEI}, v{vAEi} offset:{L_EIDX + tile_off * 128}')


def oad_read(a, dst, tile_off):
    a(f'ds_read_u16 v{dst}, v{vAOd} offset:{L_OAD + tile_off * 64}')


def dma(slot, esel):
    out = []
    for j in range(4):
        out.append(f's_add_u32 m0, s{sRing}, {slot * 4096 + j * 1024}')
        out.append(f'buffer_load_dwordx4 {V(vIx + 2 * j, 2)}, {S(sT)}, 0 idxen offen lds')
    out.append(f'buffer_load_dwordx4 {V(EE[esel], 4)}, {V(vEI, 2)}, {S(sE)}, 0 idxen offen')
    return out


def operand_reads(slot, sp, oa):
    o = [f'ds_write_b16 v{oa}, v{vOne16}']
    o += [f'ds_read_b128 {V(OO, 4)}, v{vO0a}', f'ds_read_b128 {V(OO + 4, 4)}, v{vO1a}']
    o += [f'ds_read_b64_tr_b16 {V(BP + 2 * i, 2)}, v{vRB} offset:{slot * 4096 + i * 1024}' for i in range(4)]
    o += [f'ds_read_b64_tr_b16 {V(HP + 2 * i, 2)}, v{vRH} offset:{slot * 4096 + i * 1024}' for i in range(4)]
    o += [f'ds_read_b64_tr_b16 {V(SS[sp] + 2 * i, 2)}, v{vOTb if i & 1 else vOTa} offset:{i * 512}' for i in range(4)]
    o += [f'ds_write_b16 v{oa}, v{vZero}']
    return o


def m1(p):
    return [(None, mfma(G[p], EE[p], WC, '0')),
            ('lgkmcnt(13)', mfma(G[p], OO, AP)),
            (None, mfma(G[p], OO + 4, AP + 4)),
            ('lgkmcnt(9)', mfma(G[p], I0, BP)),
            (None, mfma(G[p], I1, BP + 4)),
            ('lgkmcnt(5)', mfma(H[p], I0, HP, '0')),
            (None, mfma(H[p], I1, HP + 4))]


def valu_tile(p):
    g, h = G[p], H[p]
    out = []
    for half in range(2):
        r = range(8 * half, 8 * half + 8)
        out += [f'v_exp_f32 v{g + i}, v{g + i}' for i in r]
        out += [f'v_add_f32 v{g + i}, 1.0, v{g + i}' for i in r]
        out += [f'v_rcp_f32 v{g + i}, v{g + i}' for i in r]
        out += [f'v_mul_f32 v{h + i}, v{g + i}, v{h + i}' for i in r]
        out += [f'v_cvt_pk_bf16_f32 v{EP + i // 2}, v{g + i}, v{g + i + 1}' for i in r if i % 2 == 0]
        out += [f'v_cvt_pk_bf16_f32 v{MP + i // 2}, v{h + i}, v{h + i + 1}' for i in r if i % 2 == 0]
    return out


def m2(sp, half):
    o = 4 * half
    return [mfma(DEN, EP + o, SS[sp] + o), mfma(NUM, MP + o, SS[sp] + o)]


def iteration(a, p, opts):
    q = 1 - p
    V_ = valu_tile(p)
    ins = {i: [] for i in range(-1, 81)}
    lead = ['s_waitcnt lgkmcnt(0)', f'v_add_u32 v{vOA[q]}, s{sOb}, v{vOA[q]}']
    d = dma(p, p)
    m2b = m2(q, 1)
    ins[0] += lead + d[0:2]
    ins[1] += d[2:4] + [m2b[0]]
    ins[2] += d[4:6]
    ins[3] += d[6:9]
    tmp = Asm()
    idx_reads(tmp, p + 3)
    oad_read(tmp, vOA[p], p + 2)
    idx = [i.text for i in tmp.ins]
    ins[4] += idx[0:2]
    ins[5] += idx[2:4] + [m2b[1]]
    ins[6] += idx[4:6]
    rd = operand_reads(q, q, vOA[q])
    ins[8] += ['s_waitcnt vmcnt(5)'] + rd[0:3]
    ins[10] += rd[3:5]
    ins[11] += rd[5:7]
    ins[12] += rd[7:9]
    ins[13] += rd[9:11]
    ins[14] += rd[11:13]
    ins[15] += rd[13:16]
    mm = m1(q)
    pos = [17, 24, 30, 50, 56, 62, 68]
    for (w, m), s in zip(mm, pos):
        if w:
            ins[s].append(f's_waitcnt {w}')
        ins[s].append(m)
    m2a = m2(p, 0)
    ins[42] += [m2a[0]]
    ins[46] += [m2a[1]]
    for i in range(80):
        a(ins[i])
        a(V_[i])
    if p == 1:
        a(f'v_add_u32 v{vASrc}, 128, v{vASrc}')
        a(f'v_add_u32 v{vAEi}, 256, v{vAEi}')
        a(f'v_add_u32 v{vAOd}, 128, v{vAOd}')


STAMP0 = 84


def gen_k2(opts):
    a = Asm()
    stamps = int(opts.get('stamps', 0))
    nst = [0]

    def stamp(cyc=None):
        if stamps:
            a(f's_memrealtime s[{STAMP0}:{STAMP0 + 1}]')
            if cyc is not None:
                a(f's_memtime s[{STAMP0 + 2}:{STAMP0 + 3}]')
            a('s_waitcnt lgkmcnt(0)')
            a(f'v_writelane_b32 v{vKeep[12] + 1}, s{STAMP0}, {nst[0]}')
            if cyc is not None:
                a(f'v_writelane_b32 v{vKeep[12] + 1}, s{STAMP0 + 2}, {cyc}')
            nst[0] += 1
    globals()['_stamp'] = stamp
    a(f's_cmp_ge_u32 s2, {K2_GRID}')
    a('s_cbranch_scc1 L_k2_exit')
    stamp()
    load_kernargs(a)
    a(f'v_and_b32 v{vLane}, 63, v0')
    a(f'v_lshrrev_b32 v{vT0}, 6, v0')
    a(f'v_readfirstlane_b32 s{sW}, v{vT0}')
    a(f'v_and_b32 v{vC}, 31, v{vLane}')
    a(f'v_lshrrev_b32 v{vHH}, 5, v{vLane}')
    a(f'v_mov_b32 v{vZero}, 0')
    a(f'v_mov_b32 v{vOne16}, 0x3f80')
    a(f's_lshr_b32 s{sG}, s2, 1')
    a(f's_and_b32 s{sH}, s2, 1')
    a(f's_lshr_b32 s11, s{sW}, 2')
    a(f's_lshl_b32 s12, s11, 1')
    a(f's_add_u32 s12, s12, s{sW}')
    a(f's_and_b32 s{sB4}, s12, 3')
    a(f's_lshl_b32 s{sQ}, s{sH}, 1')
    a(f's_add_u32 s{sQ}, s{sQ}, s11')
    a(f's_lshl_b32 s{sB}, s{sG}, 2')
    a(f's_add_u32 s{sB}, s{sB}, s{sB4}')
    a(f's_mul_i32 s12, s{sB}, 625')
    a('s_add_u32 s13, s12, 656')
    a('s_add_u32 s12, s12, 31')
    a(f's_lshr_b32 s{sNB0}, s12, 5')
    a('s_lshr_b32 s13, s13, 5')
    a(f's_sub_u32 s{sNBN}, s13, s{sNB0}')
    a(f's_lshl_b32 s{sRing}, s{sW}, 13')
    a(f's_add_u32 s{sRing}, s{sRing}, {L_RING}')
    a(f's_mul_i32 s{sOb}, s{sW}, {O_STRIDE}')
    a(f's_add_u32 s{sOb}, s{sOb}, {L_O}')
    a(f's_lshl_b32 s{sXr}, s{sB4}, 13')
    a(f's_add_u32 s{sXr}, s{sXr}, {L_XR}')
    a(f's_movk_i32 s{sM512}, -512')
    a(f's_movk_i32 s{s7C0}, 0x7c0')
    a(f's_movk_i32 s{sCAP}, {CAP}')
    a(f's_mov_b32 s{sRound}, 0')
    dummy_fill(a)
    a(f'v_lshlrev_b32 v{vT0}, 5, v{vLane}')
    a(f'v_add_u32 v{vT0}, s{sOb}, v{vT0}')
    for i in range(4):
        a(f'v_mov_b32 v{BP + 8 + i}, 0')
    a(f'ds_write_b128 v{vT0}, {V(BP + 8, 4)}')
    a(f'ds_write_b128 v{vT0}, {V(BP + 8, 4)} offset:16')
    onehot_pairs(a, I0, [0, 2, 8, 10], vT0, 4)
    onehot_pairs(a, I1, [16, 18, 24, 26], vT0, 4)
    r_, g2, cch, cl = vT0, vT0 + 1, vT0 + 2, BP
    a(f'v_bfe_u32 v{r_}, v{vLane}, 2, 2')
    a(f'v_bfe_u32 v{g2}, v{vLane}, 4, 1')
    a(f'v_bfe_u32 v{cch}, v{vLane}, 1, 1')
    a(f'v_and_b32 v{cl}, 1, v{vLane}')
    a(f'v_lshl_or_b32 v{g2}, v{g2}, 1, v{cch}')
    a(f'v_lshl_add_u32 v{cch}, v{vHH}, 2, v{r_}')
    a(f'v_lshrrev_b32 v{BP + 1}, 1, v{r_}')
    a(f'v_lshlrev_b32 v{BP + 1}, 2, v{BP + 1}')
    a(f'v_xor_b32 v{BP + 1}, v{BP + 1}, v{g2}')
    a(f'v_lshlrev_b32 v{BP + 1}, 4, v{BP + 1}')
    a(f'v_lshl_add_u32 v{BP + 1}, v{cch}, 7, v{BP + 1}')
    a(f'v_lshl_add_u32 v{BP + 1}, v{cl}, 3, v{BP + 1}')
    a(f'v_add_u32 v{vRB}, s{sRing}, v{BP + 1}')
    a(f'v_xor_b32 v{BP + 1}, 64, v{BP + 1}')
    a(f'v_add_u32 v{vRH}, s{sRing}, v{BP + 1}')
    a(f'v_xor_b32 v{BP + 1}, v{g2}, v{vHH}')
    a(f'v_lshlrev_b32 v{BP + 1}, 4, v{BP + 1}')
    a(f'v_lshl_add_u32 v{BP + 1}, v{cch}, 6, v{BP + 1}')
    a(f'v_lshl_add_u32 v{BP + 1}, v{cl}, 3, v{BP + 1}')
    a(f'v_add_u32 v{vOTa}, s{sOb}, v{BP + 1}')
    a(f'v_xor_b32 v{BP + 1}, 32, v{BP + 1}')
    a(f'v_add_u32 v{vOTb}, s{sOb}, v{BP + 1}')
    a(f'v_bfe_u32 v{BP + 1}, v{vC}, 2, 2')
    a(f'v_xor_b32 v{BP + 1}, v{BP + 1}, v{vHH}')
    a(f'v_lshlrev_b32 v{BP + 1}, 4, v{BP + 1}')
    a(f'v_lshl_add_u32 v{BP + 1}, v{vC}, 6, v{BP + 1}')
    a(f'v_add_u32 v{vO0a}, s{sOb}, v{BP + 1}')
    a(f'v_xor_b32 v{BP + 1}, 32, v{BP + 1}')
    a(f'v_add_u32 v{vO1a}, s{sOb}, v{BP + 1}')
    a(f'v_lshrrev_b32 v{BP + 1}, 2, v{vLane}')
    a(f'v_and_b32 v{BP + 1}, 4, v{BP + 1}')
    a(f'v_and_b32 v{BP + 2}, 7, v{vLane}')
    a(f'v_xor_b32 v{BP + 1}, v{BP + 1}, v{BP + 2}')
    a(f'v_lshlrev_b32 v{vIx + 1}, 4, v{BP + 1}')
    for j in range(1, 4):
        a(f'v_mov_b32 v{vIx + 2 * j + 1}, v{vIx + 1}')
    a(f'v_lshlrev_b32 v{vEI + 1}, 4, v{vHH}')
    a(f'v_and_b32 v{vL15}, 15, v{vLane}')
    a(f'v_mov_b32 v{vL15 + 1}, 0x20000000')
    a(f'v_lshrrev_b32 v{vT0}, 4, v{vLane}')
    a(f's_lshl_b32 s11, s{sW}, 4')
    a(f'v_add_u32 v{vT0}, s11, v{vT0}')
    a(f'v_mul_u32_u24 v{kCb}, {CH}, v{vT0}')
    a(f'v_lshlrev_b32 v{kDc}, 4, v{vT0}')
    a(f'v_lshlrev_b32 v{vT0 + 1}, 1, v{vT0}')
    a('s_waitcnt lgkmcnt(0)')
    stamp()
    srd(a, sO, S_WS, OFF_BYTES, off=WS_OFF)
    a(f's_lshl_b32 s11, s{sG}, 10')
    a(f'v_add_u32 v{vT0 + 1}, s11, v{vT0 + 1}')
    for k in range(4):
        a(f'buffer_load_ushort v{kS[k]}, v{vT0 + 1}, {S(sO)}, 0 offen offset:{8 * k}')
    for k in range(4):
        a(f'buffer_load_ushort v{kEnd[k]}, v{vT0 + 1}, {S(sO)}, 0 offen offset:{1024 + 8 * k}')
    a(f's_lshl_b32 s11, s{sB}, 8')
    a(f'v_lshl_add_u32 v{vT0}, v{vLane}, 2, s11')
    a(f'buffer_load_dword v{S_OFF0}, v{vT0}, {S(sO)}, 0 offen')
    a(f'buffer_load_dword v{S_OFF0 + 1}, v{vT0}, {S(sO)}, 0 offen offset:256')
    srd(a, sX, S_X, N * 256)
    srd(a, sF, S_WS, WS_END - WS_FRA, off=WS_FRA)
    srd(a, sR, S_WS, E * 4, off=WS_REC)
    a(f's_lshr_b32 s11, s{sW}, 2')
    a('s_lshl_b32 s12, s11, 4')
    a(f'v_lshrrev_b32 v{vT0}, 4, v{vLane}')
    a(f'v_add_u32 v{vT0}, s12, v{vT0}')
    a(f'v_and_b32 v{vT0 + 1}, 15, v{vLane}')
    a('s_lshl_b32 s13, s11, 12')
    a(f's_add_u32 s13, s13, s{sXr}')
    for j in range(4):
        a(f'v_add_u32 v{BP}, {4 * j}, v{vT0}')
        a(f'v_and_b32 v{BP + 1}, 15, v{BP}')
        a(f'v_xor_b32 v{BP + 1}, v{BP + 1}, v{vT0 + 1}')
        a(f'v_add_u32 v{BP}, s{sNB0}, v{BP}')
        a(f'v_lshlrev_b32 v{BP}, 8, v{BP}')
        a(f'v_lshl_add_u32 v{BP}, v{BP + 1}, 4, v{BP}')
        a(f's_add_u32 m0, s13, {j * 1024}')
        a('s_nop 0')
        a(f'buffer_load_dwordx4 v{BP}, {S(sX)}, 0 offen lds')
    a(f's_lshl_b32 s11, s{sQ}, 13')
    a(f'v_lshl_add_u32 v{vT0}, v{vLane}, 4, s11')
    for s in range(8):
        if s < 4:
            a(f'buffer_load_dwordx4 {V(WA + 4 * s, 4)}, v{vT0}, {S(sF)}, 0 offen offset:{s * 1024}')
        else:
            if s == 4:
                a(f'v_add_u32 v{vT0 + 1}, 4096, v{vT0}')
            a(f'buffer_load_dwordx4 {V(WA + 4 * s, 4)}, v{vT0 + 1}, {S(sF)}, 0 offen offset:{(s - 4) * 1024}')
    a(f's_mov_b32 s12, {WS_FRU - WS_FRA}')
    a(f's_add_u32 s13, s12, 4096')
    for s in range(8):
        a(f'buffer_load_dwordx4 {V(WU[s], 4)}, v{vT0}, {S(sF)}, {"s12" if s < 4 else "s13"} offen offset:{(s & 3) * 1024}')
    a(f's_lshl_b32 s11, s{sQ}, 10')
    a(f's_add_u32 s11, s11, {WS_FRC - WS_FRA}')
    a(f'v_lshlrev_b32 v{vT0 + 1}, 4, v{vLane}')
    a(f'buffer_load_dwordx4 {V(WC, 4)}, v{vT0 + 1}, {S(sF)}, s11 offen')
    NFIRST = 8 + 2 + 4 + 8 + 8 + 1
    a(f's_mul_i32 s11, s{sQ}, {TQ}')
    a(f's_add_u32 s{sT}, s{S_WS}, s11')
    a(f's_addc_u32 s{sT + 1}, s{S_WS + 1}, 0')
    a(f's_and_b32 s{sT + 1}, s{sT + 1}, 0xffff')
    a(f's_or_b32 s{sT + 1}, s{sT + 1}, {128 << 16}')
    a(f's_mov_b32 s{sT + 2}, {N}')
    a(f's_mov_b32 s{sT + 3}, {SRD3:#x}')
    srd(a, sE, S_WS, E, off=WS_ES, stride=32)
    srd(a, sOut, S_OUT, N * 256)
    a(f's_waitcnt vmcnt({NFIRST - 8})')
    for k in range(4):
        a(f'v_add_u32 v{vP[k]}, v{kS[k]}, v{vL15}')
    stamp()
    issue_rec_loads(a)
    NPF = 2 if int(opts.get('prefetch', 1)) else 0
    if NPF:
        a(f's_mul_i32 s11, s{sH}, {2 * TQ}')
        a(f's_add_u32 s{sPF}, s{S_WS}, s11')
        a(f's_addc_u32 s{sPF + 1}, s{S_WS + 1}, 0')
        a(f's_and_b32 s{sPF + 1}, s{sPF + 1}, 0xffff')
        a(f's_mov_b32 s{sPF + 2}, {2 * TQ}')
        a(f's_mov_b32 s{sPF + 3}, {SRD3:#x}')
        a('s_lshr_b32 s11, s2, 3')
        a('s_lshl_b32 s11, s11, 3')
        a(f's_add_u32 s11, s11, s{sW}')
        a('s_lshl_b32 s11, s11, 7')
        a(f'v_lshlrev_b32 v{vT0}, 15, v{vLane}')
        a(f'v_add_u32 v{vT0}, s11, v{vT0}')
        a(f'buffer_load_dword v{vPF}, v{vT0}, {S(sPF)}, 0 offen')
        a(f'v_add_u32 v{vT0}, {64 << 15}, v{vT0}')
        a(f'buffer_load_dword v{vPF + 1}, v{vT0}, {S(sPF)}, 0 offen')
    a(f's_waitcnt vmcnt({NFIRST - 10 + 8 + NPF})')
    o0, o1 = S_OFF0, S_OFF0 + 1
    t = [OO + 2, OO + 3, OO + 4, OO + 5, OO + 6, OO + 7]
    a(f'v_and_b32 v{t[0]}, 0xffff, v{o0}')
    a(f'v_lshrrev_b32 v{t[1]}, 16, v{o0}')
    a(f'v_and_b32 v{t[2]}, 0xffff, v{o1}')
    a(f'v_lshrrev_b32 v{t[3]}, 16, v{o1}')
    a(f'v_sub_u32 v{t[2]}, v{t[2]}, v{t[0]}')
    a(f'v_sub_u32 v{t[3]}, v{t[3]}, v{t[1]}')
    a(f'v_add_u32 v{t[4]}, v{t[2]}, v{t[3]}')
    a(f'v_mov_b32 v{t[5]}, v{t[4]}')
    wave_scan_incl(a, t[5])
    a(f'v_readlane_b32 s{sCnt}, v{t[5]}, 63')
    a(f'v_sub_u32 v{t[5]}, v{t[5]}, v{t[4]}')
    a(f'v_mul_u32_u24 v{t[4]}, {2 * CH}, v{vLane}')
    a(f's_lshl_b32 s11, s{sB4}, 9')
    a(f'v_sub_u32 v{t[4]}, s11, v{t[4]}')
    a(f'v_add_u32 v{t[5]}, v{t[5]}, v{t[4]}')
    a(f'v_sub_u32 v{kD0}, v{t[5]}, v{t[0]}')
    a(f'v_add_u32 v{t[5]}, v{t[5]}, v{t[2]}')
    a(f'v_sub_u32 v{t[5]}, v{t[5]}, v{t[1]}')
    a(f'v_subrev_u32 v{kD1}, {CH}, v{t[5]}')
    a(f'v_lshlrev_b32 v{vT0}, 5, v{vLane}')
    a(f's_lshl_b32 s11, s{sB4}, 2')
    a(f'v_add_u32 v{vT0}, s11, v{vT0}')
    a(f'ds_write_b32 v{vT0}, v{kD0} offset:{L_DELTA}')
    a(f'ds_write_b32 v{vT0}, v{kD1} offset:{L_DELTA + 16}')
    a(f'v_mov_b32 v{vT0 + 1}, s{sCnt}')
    a(f'v_mov_b32 v{vT0 + 2}, s11')
    a(f'ds_write_b32 v{vT0 + 2}, v{vT0 + 1} offset:{L_CNT}')
    a(f's_lshl_b32 s11, s{sB4}, 9')
    a(f'v_lshrrev_b32 v{vT0}, 3, v{vLane}')
    a(f'v_add_u32 v{vT0}, s11, v{vT0}')
    a(f'v_lshlrev_b32 v{vASrc}, 1, v{vT0}')
    a(f'v_add_u32 v{vT0}, s11, v{vC}')
    a(f'v_lshlrev_b32 v{vAEi}, 2, v{vT0}')
    a(f'v_lshlrev_b32 v{vAOd}, 1, v{vT0}')
    a(f's_waitcnt vmcnt({8 + 8 + 1 + 8 + NPF}) lgkmcnt(0)')
    a('s_barrier')
    stamp()
    placement(a, 'a', NPF)
    more_check(a, 'a')
    stamp()
    a(f'v_mov_b32 v{vT0}, 0')
    a('s_waitcnt lgkmcnt(0)')
    a('s_barrier')
    a(f'ds_read_b128 {V(BP, 4)}, v{vT0} offset:{L_CNT}')
    a('s_waitcnt lgkmcnt(0)')
    a(f'v_max_u32 v{BP}, v{BP}, v{BP + 1}')
    a(f'v_max3_u32 v{BP}, v{BP}, v{BP + 2}, v{BP + 3}')
    a(f'v_readfirstlane_b32 s11, v{BP}')
    a(f's_add_u32 s11, s11, {CAP - 1}')
    a(f's_mov_b32 s12, {(1 << 32) // CAP + 1}')
    a(f's_mul_hi_u32 s{sRounds}, s11, s12')
    set_tiles(a)
    for i in range(32):
        a(f'v_mov_b32 v{DEN + i}, 0')

    a.label('L_pipe')
    idx_reads(a, 0)
    oad_read(a, vOA[0], 0)
    oad_read(a, vOA[1], 1)
    a('s_waitcnt lgkmcnt(2)')
    a(dma(0, 0))
    idx_reads(a, 1)
    a('s_waitcnt lgkmcnt(0)')
    a(dma(1, 1))
    idx_reads(a, 2)
    a(f's_cmp_lg_u32 s{sRound}, 0')
    a('s_cbranch_scc1 L_node_done')
    a(f'v_and_b32 v{vT0}, 15, v{vC}')
    a(f'v_xor_b32 v{vT0}, v{vT0}, v{vHH}')
    a(f'v_lshlrev_b32 v{vT0}, 4, v{vT0}')
    a(f'v_lshl_add_u32 v{vT0}, v{vC}, 8, v{vT0}')
    a(f'v_add_u32 v{vT0}, s{sXr}, v{vT0}')
    XA = [BP, BP + 4, HP, HP + 4, OO, OO + 4, SS[0], SS[0] + 4]
    for s in range(8):
        a(f'v_xor_b32 v{vT0 + 1}, {s << 5}, v{vT0}')
        a(f'ds_read_b128 {V(XA[s], 4)}, v{vT0 + 1}')
    for s in range(8):
        a(f's_waitcnt lgkmcnt({7 - s})')
        a(mfma(G[0], XA[s], WA + 4 * s, '0' if s == 0 else None))
    a(f'v_and_b32 v{vT0}, 0x13, v{vC}')
    a(f'v_and_b32 v{vT0 + 1}, 4, v{vC}')
    a(f'v_lshl_or_b32 v{vT0}, v{vT0 + 1}, 1, v{vT0}')
    a(f'v_and_b32 v{vT0 + 1}, 8, v{vC}')
    a(f'v_lshrrev_b32 v{vT0 + 1}, 1, v{vT0 + 1}')
    a(f'v_or_b32 v{vMu}, v{vT0}, v{vT0 + 1}')
    a(f'v_and_b32 v{vT0}, 15, v{vMu}')
    a(f'v_xor_b32 v{vT0}, v{vT0}, v{vHH}')
    a(f'v_lshlrev_b32 v{vT0}, 4, v{vT0}')
    a(f'v_lshl_add_u32 v{vT0}, v{vMu}, 8, v{vT0}')
    a(f'v_add_u32 v{vT0}, s{sXr}, v{vT0}')
    for s in range(8):
        a(f'v_xor_b32 v{vT0 + 1}, {s << 5}, v{vT0}')
        a(f'ds_read_b128 {V(XA[s], 4)}, v{vT0 + 1}')
    for s in range(8):
        a(f's_waitcnt lgkmcnt({7 - s})')
        a(mfma(UU, WU[s], XA[s], '0' if s == 0 else None))
    a(f's_mov_b32 s11, {NEG_LOG2E:#x}')
    for i in range(16):
        a(f'v_mul_f32 v{G[0] + i}, s11, v{G[0] + i}')
    for i in range(8):
        a(f'v_cvt_pk_bf16_f32 v{AP + i}, v{G[0] + 2 * i}, v{G[0] + 2 * i + 1}')
    a.label('L_node_done')
    stamp()
    a(f's_cmp_eq_u32 s{sTiles}, 0')
    a('s_cbranch_scc1 L_round_end')
    for i in range(4):
        a(f'v_mov_b32 v{SS[1] + 4 + i}, 0')
        a(f'v_mov_b32 v{EP + 4 + i}, 0')
        a(f'v_mov_b32 v{MP + 4 + i}, 0')
    a('s_waitcnt lgkmcnt(0)')
    a(f'v_add_u32 v{vOA[0]}, s{sOb}, v{vOA[0]}')
    a('s_waitcnt vmcnt(5)')
    a(operand_reads(0, 0, vOA[0]))
    for w, m in m1(0):
        if w:
            a(f's_waitcnt {w}')
        a(m)
    stamp(13)
    a(f's_mov_b32 s{sLeft}, s{sTiles}')
    a.label('L_loop')
    iteration(a, 0, opts)
    a(f's_sub_u32 s{sLeft}, s{sLeft}, 1')
    a(f's_cmp_eq_u32 s{sLeft}, 0')
    a('s_cbranch_scc1 L_exit0')
    iteration(a, 1, opts)
    a(f's_sub_u32 s{sLeft}, s{sLeft}, 1')
    a(f's_cmp_lg_u32 s{sLeft}, 0')
    a('s_cbranch_scc1 L_loop')
    a('s_nop 1')
    a(m2(1, 1))
    a('s_branch L_round_end')
    a.label('L_exit0')
    a('s_nop 1')
    a(m2(0, 1))
    a.label('L_round_end')
    a(f's_add_u32 s{sRound}, s{sRound}, 1')
    a(f's_cmp_lt_u32 s{sRound}, s{sRounds}')
    a('s_cbranch_scc1 L_next_round')

    stamp(14)
    a('s_waitcnt vmcnt(0) lgkmcnt(0)')
    a(f'v_and_b32 v{vT0}, 15, v{vMu}')
    a(f's_lshl_b32 s11, s{sQ}, 2')
    a(f'v_xor_b32 v{vT0}, s11, v{vT0}')
    a(f'v_lshlrev_b32 v{vT0}, 4, v{vT0}')
    a(f'v_lshl_add_u32 v{vT0}, v{vMu}, 8, v{vT0}')
    a(f'v_lshl_add_u32 v{vT0}, v{vHH}, 3, v{vT0}')
    a(f'v_add_u32 v{vT0}, s{sXr}, v{vT0}')
    for i in range(4):
        a(f'v_xor_b32 v{vT0 + 1}, {i << 4}, v{vT0}')
        a(f'ds_read_b64 {V(BP + 2 * i, 2)}, v{vT0 + 1}')
    a(f'v_cmp_gt_u32 vcc, s{sNBN}, v{vMu}')
    a(f'v_add_u32 v{vT0}, s{sNB0}, v{vMu}')
    a(f'v_lshlrev_b32 v{vT0}, 8, v{vT0}')
    a(f'v_lshl_add_u32 v{vT0}, v{vHH}, 4, v{vT0}')
    a(f's_lshl_b32 s11, s{sQ}, 6')
    a(f'v_add_u32 v{vT0}, s11, v{vT0}')
    a(f'v_bfrev_b32 v{vT0 + 1}, 1')
    a(f'v_cndmask_b32 v{vT0}, v{vT0 + 1}, v{vT0}, vcc')
    a(f's_mov_b32 s11, 0x358637bd')
    for i in range(16):
        a(f'v_add_f32 v{DEN + i}, s11, v{DEN + i}')
    for i in range(16):
        a(f'v_rcp_f32 v{DEN + i}, v{DEN + i}')
    for i in range(16):
        a(f'v_fma_f32 v{NUM + i}, v{NUM + i}, v{DEN + i}, v{UU + i}')
    for i in range(16):
        a(f'v_max_f32 v{NUM + i}, 0, v{NUM + i}')
    a('s_waitcnt lgkmcnt(0)')
    for i in range(8):
        a(f'v_lshlrev_b32 v{DEN + 2 * i}, 16, v{BP + i}')
        a(f'v_and_b32 v{DEN + 2 * i + 1}, 0xffff0000, v{BP + i}')
    for i in range(16):
        a(f'v_add_f32 v{NUM + i}, v{NUM + i}, v{DEN + i}')
    for i in range(8):
        a(f'v_cvt_pk_bf16_f32 v{EP + i}, v{NUM + 2 * i}, v{NUM + 2 * i + 1}')
    for p in range(2):
        a(f'v_permlane32_swap_b32 v{EP + 4 * p}, v{EP + 4 * p + 2}')
        a(f'v_permlane32_swap_b32 v{EP + 4 * p + 1}, v{EP + 4 * p + 3}')
    for p in range(2):
        a(f'buffer_store_dwordx4 {V(EP + 4 * p, 4)}, v{vT0}, {S(sOut)}, 0 offen offset:{32 * p}')
    if stamps:
        a('s_waitcnt vmcnt(0)')
        stamp()
        a(f'v_writelane_b32 v{vKeep[12] + 1}, s{sTiles}, 15')
        if stamps == 2:
            srd(a, sPF, S_WS, 1 << 20, off=33 << 20)
            a(f'v_mov_b32 v{vT0}, 0')
            a(f'buffer_load_dword v{vT0 + 1}, v{vT0}, {S(sPF)}, 0 offen')
            srd(a, sX, S_DBG, 256)
            a('s_waitcnt vmcnt(0)')
            a(f'v_sub_u32 v{vT0 + 1}, v{vKeep[12] + 1}, v{vT0 + 1}')
            a(f'v_lshlrev_b32 v{vT0}, 2, v{vLane}')
            a(f'v_cmp_gt_u32 vcc, 9, v{vLane}')
            a('s_mov_b64 exec, vcc')
            a(f'buffer_atomic_umax v{vT0 + 1}, v{vT0}, {S(sX)}, 0 offen')
            a('s_endpgm')
        srd(a, sPF, S_WS, 1 << 20, off=32 << 20)
        a(f's_lshl_b32 s11, s2, 3')
        a(f's_add_u32 s11, s11, s{sW}')
        a('s_lshl_b32 s11, s11, 6')
        a(f'v_lshl_add_u32 v{vT0}, v{vLane}, 2, s11')
        a(f'v_cmp_gt_u32 vcc, 16, v{vLane}')
        a('s_mov_b64 exec, vcc')
        a(f'buffer_store_dword v{vKeep[12] + 1}, v{vT0}, {S(sPF)}, 0 offen')
    a('s_endpgm')

    a.label('L_next_round')
    a('s_waitcnt vmcnt(0) lgkmcnt(0)')
    a('s_barrier')
    dummy_fill(a)
    a(f'v_subrev_u32 v{kD0}, {CAP}, v{kD0}')
    a(f'v_subrev_u32 v{kD1}, {CAP}, v{kD1}')
    a(f'v_lshlrev_b32 v{vT0}, 5, v{vLane}')
    a(f's_lshl_b32 s11, s{sB4}, 2')
    a(f'v_add_u32 v{vT0}, s11, v{vT0}')
    a(f'ds_write_b32 v{vT0}, v{kD0} offset:{L_DELTA}')
    a(f'ds_write_b32 v{vT0}, v{kD1} offset:{L_DELTA + 16}')
    a('s_waitcnt lgkmcnt(0)')
    a('s_barrier')
    a(f'v_and_b32 v{vL15}, 15, v{vLane}')
    a(f'v_mov_b32 v{vL15 + 1}, 0x20000000')
    for k in range(4):
        a(f'v_add_u32 v{vP[k]}, v{kS[k]}, v{vL15}')
    issue_rec_loads(a)
    placement(a, 'r', 0)
    more_check(a, 'r')
    a('s_waitcnt lgkmcnt(0)')
    a('s_barrier')
    set_tiles(a)
    a(f's_lshl_b32 s11, s{sB4}, 9')
    a(f'v_lshrrev_b32 v{vT0}, 3, v{vLane}')
    a(f'v_add_u32 v{vT0}, s11, v{vT0}')
    a(f'v_lshlrev_b32 v{vASrc}, 1, v{vT0}')
    a(f'v_add_u32 v{vT0}, s11, v{vC}')
    a(f'v_lshlrev_b32 v{vAEi}, 2, v{vT0}')
    a(f'v_lshlrev_b32 v{vAOd}, 1, v{vT0}')
    a('s_branch L_pipe')
    a.label('L_k2_exit')
    a('s_endpgm')
    return a
```

```python
N = 10000
E = 160000
NB = 512
NG = 128
NC = 128
CH = 1250
TQ = N * 128
SEG = 32

WS_TBL = 0
WS_ES = 4 * TQ
WS_REC = WS_ES + E * 32
WS_REC2 = WS_REC + E * 4
WS_OFF = WS_REC2 + NG * NC * SEG * 4
OFF_ROWS = NB + 2
OFF_BYTES = OFF_ROWS * 256
WS_FR = (WS_OFF + OFF_BYTES + 1023) // 1024 * 1024
FRQ = 17 * 1024
WS_CONST = WS_FR + 4 * FRQ
NCONST = 12
WS_END = WS_CONST + 64 * NCONST * 4

BUCKET_MAGIC = 219902326
NEG_LOG2E = 0xBFB8AA3B
SRD3 = 0x00020000

S_X, S_EA, S_SRC, S_DST, S_WA, S_WB, S_WC, S_WU = 16, 18, 20, 22, 24, 26, 28, 30
S_WV, S_OUT, S_DBG, S_WS = 32, 34, 36, 38


def n0(b):
    return (625 * b + 31) >> 5


def load_kernargs(a):
    a('s_load_dwordx16 s[16:31], s[0:1], 0')
    a('s_load_dwordx8 s[32:39], s[0:1], 64')


def shift_ws(a, opts):
    off = int(opts.get('wsoff', 0)) << 20
    if off:
        a(f's_add_u32 s{S_WS}, s{S_WS}, {off}')
        a(f's_addc_u32 s{S_WS + 1}, s{S_WS + 1}, 0')


def srd(a, d, ptr, nbytes, off=0, stride=0):
    if off:
        a(f's_add_u32 s{d}, s{ptr}, {off}')
        a(f's_addc_u32 s{d + 1}, s{ptr + 1}, 0')
    else:
        a(f's_mov_b32 s{d}, s{ptr}')
        a(f's_mov_b32 s{d + 1}, s{ptr + 1}')
    if stride:
        a(f's_or_b32 s{d + 1}, s{d + 1}, {stride << 16}')
    a(f's_mov_b32 s{d + 2}, {nbytes}')
    a(f's_mov_b32 s{d + 3}, {SRD3:#x}')


def S(d, n=4):
    return f's[{d}:{d + n - 1}]'


def V(d, n=1):
    return f'v{d}' if n == 1 else f'v[{d}:{d + n - 1}]'


def mfma(d, a, b, c=None):
    cc = V(d, 16) if c is None else c
    return f'v_mfma_f32_32x32x16_bf16 {V(d, 16)}, {V(a, 4)}, {V(b, 4)}, {cc}'


def wave_scan_incl(a, v):
    for sh in (1, 2, 4, 8):
        a(f'v_add_u32_dpp v{v}, v{v}, v{v} row_shr:{sh} row_mask:0xf bank_mask:0xf')
    a(f'v_add_u32_dpp v{v}, v{v}, v{v} row_bcast:15 row_mask:0xa bank_mask:0xf')
    a(f'v_add_u32_dpp v{v}, v{v}, v{v} row_bcast:31 row_mask:0xc bank_mask:0xf')


def wg_to_group(a, swg, sG, sH):
    a(f's_and_b32 s{sH}, s{swg}, 1')
    a(f's_bfe_u32 s{sG}, s{swg}, 0x20001')
    a(f's_lshl_b32 s{sG}, s{sG}, 5')
    a(f's_lshr_b32 s11, s{swg}, 3')
    a(f's_add_u32 s{sG}, s{sG}, s11')
```

```python
from asm import Asm
from common import *

K1_BIN0, K1_T10, K1_FR0, K1_END = 0, 128, 384, 386
K1_LDS = 66048
K1_VGPR = 112

L_HIST = 0
L_EXC = 2048
L_FLAG = 4096
L_RECS = 4352
L_R2 = 9472
L_ES = 25856

STAMPS = 0
NT = ' nt'


def st(a, i):
    if STAMPS:
        a('s_memrealtime s[70:71]')
        a('s_waitcnt lgkmcnt(0)')
        a(f'v_writelane_b32 v110, s70, {i}')


def k1_end(a):
    if STAMPS:
        a('s_mov_b64 exec, -1')
        st(a, 6)
        a('s_waitcnt vmcnt(0) lgkmcnt(0)')
        st(a, 7)
        a('v_writelane_b32 v110, s68, 0')
        srd(a, 72, S_WS, 1 << 20, off=33 << 20)
        a('s_lshl_b32 s11, s2, 3')
        a('s_add_u32 s11, s11, s3')
        a('s_lshl_b32 s11, s11, 5')
        a('v_lshl_add_u32 v4, v1, 2, s11')
        a('v_cmp_gt_u32 vcc, 8, v1')
        a('s_mov_b64 exec, vcc')
        a('buffer_store_dword v110, v4, s[72:75], 0 offen')
    a('s_endpgm')


def gen_bin(a):
    sDST, sSRC, sEA, sWS = 40, 44, 48, 52
    sC, sW = 2, 3
    vTid, vLane = 0, 1
    vI4, vI32 = 2, 3
    vD = [4, 5, 6]
    vS = [7, 8, 9]
    vE = [12, 20, 28]
    vB4 = [36, 37, 38]
    vRank = [39, 40, 41]
    vRec = [42, 43, 44]
    vT = [45, 46, 47, 48, 49]
    vOne = 50
    vPos = [54, 55, 56]
    vGx = [57, 58, 59]
    vCn = 60
    vEx = 68
    sMask2 = 64

    st(a, 1)
    srd(a, sDST, S_DST, E * 4)
    a(f's_mul_i32 s4, s{sC}, {CH}')
    a(f'v_add_u32 v{vI32}, s4, v{vTid}')
    a(f'v_lshlrev_b32 v{vI4}, 2, v{vI32}')
    a('s_movk_i32 s5, 4096')
    for r in range(3):
        if r < 2:
            a(f'buffer_load_dword v{vD[r]}, v{vI4}, {S(sDST)}, 0 offen offset:{2048 * r}')
        else:
            a(f'buffer_load_dword v{vD[r]}, v{vI4}, {S(sDST)}, s5 offen')
    srd(a, sSRC, S_SRC, E * 4)
    for r in range(3):
        if r < 2:
            a(f'buffer_load_dword v{vS[r]}, v{vI4}, {S(sSRC)}, 0 offen offset:{2048 * r}')
        else:
            a(f'buffer_load_dword v{vS[r]}, v{vI4}, {S(sSRC)}, s5 offen')
    a(f'v_lshlrev_b32 v{vT[0]}, 2, v{vTid}')
    a(f'v_mov_b32 v{vT[1]}, 0')
    a(f'ds_write_b32 v{vT[0]}, v{vT[1]} offset:{L_HIST}')
    a(f'ds_write_b32 v{vT[1]}, v{vT[1]} offset:{L_FLAG}')
    for i in range(4):
        a(f'v_mov_b32 v{vCn + i}, -1')
    a(f'v_lshlrev_b32 v{vT[2]}, 4, v{vTid}')
    a(f'ds_write_b128 v{vT[2]}, {V(vCn, 4)} offset:{L_R2}')
    a(f'ds_write_b128 v{vT[2]}, {V(vCn, 4)} offset:{L_R2 + 8192}')
    a(f'v_mov_b32 v{vOne}, 1')
    a(f'v_lshlrev_b32 v{vI32}, 5, v{vI32}')
    srd(a, sEA, S_EA, E * 32)
    srd(a, sWS, S_WS, WS_END)
    a(f's_movk_i32 s8, {CH - 1024}')
    a(f'v_cmp_gt_u32 {S(sMask2, 2)}, s8, v{vTid}')
    a(f's_mov_b32 s9, {BUCKET_MAGIC}')
    a('s_movk_i32 s10, 625')
    a('s_movk_i32 s6, 16384')
    a('s_mov_b32 s7, 32768')
    a('s_waitcnt lgkmcnt(0)')
    a('s_barrier')
    for r in range(3):
        a(f's_waitcnt vmcnt({5 - r})')
        a(f'v_mul_hi_u32 v{vRec[r]}, v{vD[r]}, s9')
        a(f'v_lshlrev_b32 v{vB4[r]}, 2, v{vRec[r]}')
        if r == 2:
            a(f's_mov_b64 exec, {S(sMask2, 2)}')
        a(f'ds_add_rtn_u32 v{vRank[r]}, v{vB4[r]}, v{vOne} offset:{L_HIST}')
        if r == 2:
            a('s_mov_b64 exec, -1')
    for r in range(3):
        so = ['0', 's6', 's7'][r]
        a(f'buffer_load_dwordx4 {V(vE[r], 4)}, v{vI32}, {S(sEA)}, {so} offen')
        a(f'buffer_load_dwordx4 {V(vE[r] + 4, 4)}, v{vI32}, {S(sEA)}, {so} offen offset:16')
    for r in range(3):
        b = vRec[r]
        a(f'v_mad_u32_u24 v{vT[1]}, v{b}, s10, 31')
        a(f'v_lshrrev_b32 v{vT[1]}, 5, v{vT[1]}')
        a(f'v_sub_u32 v{vT[1]}, v{vD[r]}, v{vT[1]}')
        a(f'v_and_b32 v{vT[2]}, 0x13, v{vT[1]}')
        a(f'v_lshlrev_b32 v{vT[2]}, 1, v{vT[2]}')
        a(f'v_and_b32 v{vT[3]}, 4, v{vT[1]}')
        a(f'v_lshl_or_b32 v{vT[2]}, v{vT[3]}, 2, v{vT[2]}')
        a(f'v_and_or_b32 v{vT[2]}, v{vT[1]}, 8, v{vT[2]}')
        a(f'v_and_b32 v{b}, 3, v{b}')
        a(f'v_lshlrev_b32 v{b}, 22, v{b}')
        a(f'v_lshl_or_b32 v{b}, v{vT[2]}, 16, v{b}')
    for r in range(3):
        a(f's_waitcnt vmcnt({8 - r})')
        a(f'v_or_b32 v{vRec[r]}, v{vRec[r]}, v{vS[r]}')
    a('s_waitcnt lgkmcnt(0)')
    st(a, 2)
    a('s_barrier')
    a(f'v_lshlrev_b32 v{vT[0]}, 5, v{vLane}')
    a(f'ds_read_b128 {V(vCn, 4)}, v{vT[0]} offset:{L_HIST}')
    a(f'ds_read_b128 {V(vCn + 4, 4)}, v{vT[0]} offset:{L_HIST + 16}')
    a('s_waitcnt lgkmcnt(0)')
    a(f'v_add3_u32 v{vT[1]}, v{vCn}, v{vCn + 1}, v{vCn + 2}')
    a(f'v_add3_u32 v{vT[2]}, v{vCn + 3}, v{vCn + 4}, v{vCn + 5}')
    a(f'v_add3_u32 v{vT[1]}, v{vT[1]}, v{vCn + 6}, v{vCn + 7}')
    a(f'v_add_u32 v{vT[1]}, v{vT[1]}, v{vT[2]}')
    a(f'v_mov_b32 v{vT[2]}, v{vT[1]}')
    wave_scan_incl(a, vT[2])
    a(f'v_sub_u32 v{vEx}, v{vT[2]}, v{vT[1]}')
    for i in range(1, 8):
        a(f'v_add_u32 v{vEx + i}, v{vEx + i - 1}, v{vCn + i - 1}')
    a(f'ds_write_b128 v{vT[0]}, {V(vEx, 4)} offset:{L_EXC}')
    a(f'ds_write_b128 v{vT[0]}, {V(vEx + 4, 4)} offset:{L_EXC + 16}')
    for r in range(3):
        a(f'ds_read_b32 v{vPos[r]}, v{vB4[r]} offset:{L_EXC}')
        a(f'v_and_b32 v{vB4[r]}, -16, v{vB4[r]}')
        a(f'ds_read_b32 v{vGx[r]}, v{vB4[r]} offset:{L_EXC}')
    a(f's_lshl_b32 s11, s{sW}, 2')
    a(f'v_add_u32 v{vT[1]}, s11, v{vT[0]}')
    a(f'ds_read_b32 v{vT[2]}, v{vT[1]} offset:{L_EXC}')
    a(f'v_lshlrev_b32 v{vT[1]}, 6, v{vT[1]}')
    a(f's_lshl_b32 s12, s{sC}, 1')
    a(f's_add_u32 s12, s12, {WS_OFF}')
    st(a, 3)
    a('s_waitcnt vmcnt(0) lgkmcnt(0)')
    a(f'buffer_store_short v{vT[2]}, v{vT[1]}, {S(sWS)}, s12 offen')
    a('s_movk_i32 s13, 32')
    for r in range(3):
        a(f'v_add_u32 v{vPos[r]}, v{vPos[r]}, v{vRank[r]}')
        a(f'v_sub_u32 v{vGx[r]}, v{vPos[r]}, v{vGx[r]}')
        a(f'v_lshlrev_b32 v{vT[1]}, 2, v{vPos[r]}')
        a(f'v_lshlrev_b32 v{vT[2]}, 5, v{vPos[r]}')
        a(f'v_lshlrev_b32 v{vT[3]}, 3, v{vB4[r]}')
        a(f'v_lshl_add_u32 v{vT[3]}, v{vGx[r]}, 2, v{vT[3]}')
        a(f'v_cmp_gt_u32 vcc, s13, v{vGx[r]}')
        if r == 2:
            a(f's_mov_b64 exec, {S(sMask2, 2)}')
        a(f'ds_write_b32 v{vT[1]}, v{vRec[r]} offset:{L_RECS}')
        a(f'ds_write_b128 v{vT[2]}, {V(vE[r], 4)} offset:{L_ES}')
        a(f'ds_write_b128 v{vT[2]}, {V(vE[r] + 4, 4)} offset:{L_ES + 16}')
        a('s_and_b64 exec, exec, vcc')
        a(f'ds_write_b32 v{vT[3]}, v{vRec[r]} offset:{L_R2}')
        if r == 2:
            a(f's_andn2_b64 exec, {S(sMask2, 2)}, vcc')
        else:
            a('s_andn2_b64 exec, -1, vcc')
        a(f's_cbranch_execz L_bin_noovf{r}')
        a(f'v_mov_b32 v{vT[4]}, 0')
        a(f'ds_write_b32 v{vT[4]}, v{vOne} offset:{L_FLAG}')
        a.label(f'L_bin_noovf{r}')
        a('s_mov_b64 exec, -1')
    st(a, 4)
    a('s_waitcnt lgkmcnt(0)')
    a('s_barrier')
    st(a, 5)
    a(f'v_lshlrev_b32 v{vT[0]}, 2, v{vTid}')
    a(f'v_lshlrev_b32 v{vT[1]}, 4, v{vTid}')
    for r in range(5):
        a(f'ds_read_b128 {V(12 + 4 * r, 4)}, v{vT[1]} offset:{L_ES + 8192 * r}')
    for r in range(2):
        a(f'ds_read_b128 {V(32 + 4 * r, 4)}, v{vT[1]} offset:{L_R2 + 8192 * r}')
    for r in range(3):
        a(f'ds_read_b32 v{vD[r]}, v{vT[0]} offset:{L_RECS + 2048 * r}')
    a(f'v_mov_b32 v{vT[4]}, 0')
    a(f'ds_read_b32 v{vT[4]}, v{vT[4]} offset:{L_FLAG}')
    a(f's_mul_i32 s14, s{sC}, {CH * 32}')
    a(f's_add_u32 s14, s14, {WS_ES}')
    a(f'v_add_u32 v{vT[2]}, s14, v{vT[1]}')
    a('s_movk_i32 s4, 8192')
    a('s_movk_i32 s14, 24576')
    a(f's_movk_i32 s8, {CH * 2 - 2048}')
    a(f'v_cmp_gt_u32 vcc, s8, v{vTid}')
    for r in range(5):
        so = ['0', 's4', 's6', 's14', 's7'][r]
        a(f's_waitcnt lgkmcnt({10 - r})')
        if r == 4:
            a('s_mov_b64 exec, vcc')
        a(f'buffer_store_dwordx4 {V(12 + 4 * r, 4)}, v{vT[2]}, {S(sWS)}, {so} offen{NT}')
    a('s_mov_b64 exec, -1')
    a(f'v_lshrrev_b32 v{vT[2]}, 3, v{vTid}')
    a(f'v_lshlrev_b32 v{vT[2]}, 14, v{vT[2]}')
    a(f'v_and_b32 v{vT[3]}, 7, v{vTid}')
    a(f'v_lshl_add_u32 v{vT[2]}, v{vT[3]}, 4, v{vT[2]}')
    a(f's_lshl_b32 s11, s{sC}, 7')
    a(f's_add_u32 s11, s11, {WS_REC2}')
    a(f's_add_u32 s12, s11, {64 * 16384}')
    for r in range(2):
        a(f's_waitcnt lgkmcnt({5 - r})')
        a(f'buffer_store_dwordx4 {V(32 + 4 * r, 4)}, v{vT[2]}, {S(sWS)}, {"s11" if r == 0 else "s12"} offen{NT}')
    a(f's_mul_i32 s11, s{sC}, {CH * 4}')
    a(f's_add_u32 s11, s11, {WS_REC}')
    a('s_add_u32 s12, s11, 4096')
    for r in range(3):
        a(f's_waitcnt lgkmcnt({3 - r})')
        if r < 2:
            a(f'buffer_store_dword v{vD[r]}, v{vT[0]}, {S(sWS)}, s11 offen offset:{2048 * r}{NT}')
        else:
            a(f's_mov_b64 exec, {S(sMask2, 2)}')
            a(f'buffer_store_dword v{vD[r]}, v{vT[0]}, {S(sWS)}, s12 offen{NT}')
    a('s_mov_b64 exec, 3')
    a(f's_cmp_lg_u32 s{sW}, 0')
    a('s_cbranch_scc1 L_bin_done')
    a('s_waitcnt lgkmcnt(0)')
    a(f'v_mov_b32 v{vT[3]}, {CH}')
    a(f'v_cmp_eq_u32 vcc, 0, v{vLane}')
    a(f'v_cndmask_b32 v{vT[4]}, v{vT[4]}, v{vT[3]}, vcc')
    a(f'v_lshlrev_b32 v{vT[3]}, 8, v{vLane}')
    a(f's_lshl_b32 s12, s{sC}, 1')
    a(f's_add_u32 s12, s12, {WS_OFF + 512 * 256}')
    a(f'buffer_store_short v{vT[4]}, v{vT[3]}, {S(sWS)}, s12 offen')
    a.label('L_bin_done')
    k1_end(a)


def gen_t1(a):
    sX, sWB, sWV, sT = 40, 44, 48, 52
    sW, sG, sH, sN0, sNG = 3, 4, 5, 6, 7
    vTid, vLane = 0, 1
    vW = 8
    vXo = 40
    vAcc = 72
    vP = 88
    vT = [96, 97, 98, 99, 100, 101]
    vAW, vAX, vSt = 102, 103, 104
    vC, vHH = 105, 106

    st(a, 1)
    a(f's_sub_u32 s8, s2, {K1_T10}')
    wg_to_group(a, 8, sG, sH)
    srd(a, sWB, S_WB, 128 * 256)
    a(f's_cmp_ge_u32 s{sW}, 4')
    a(f's_cselect_b32 s{sWB}, s{S_WV}, s{S_WB}')
    a(f's_cselect_b32 s{sWB + 1}, s{S_WV + 1}, s{S_WB + 1}')
    a(f'v_lshrrev_b32 v{vT[0]}, 3, v{vLane}')
    a(f'v_and_b32 v{vT[1]}, 7, v{vLane}')
    a(f'v_lshrrev_b32 v{vT[2]}, 2, v{vLane}')
    a(f'v_and_b32 v{vT[2]}, 4, v{vT[2]}')
    a(f'v_xor_b32 v{vT[1]}, v{vT[1]}, v{vT[2]}')
    a(f'v_lshlrev_b32 v{vT[1]}, 4, v{vT[1]}')
    a(f'v_lshl_add_u32 v{vT[1]}, v{vT[0]}, 8, v{vT[1]}')
    a(f's_and_b32 s8, s{sW}, 3')
    a('s_lshl_b32 s9, s8, 13')
    a(f's_lshl_b32 s10, s{sH}, 7')
    a('s_add_u32 s9, s9, s10')
    a(f's_lshl_b32 s11, s{sW}, 12')
    for j in range(4):
        a(f's_add_u32 m0, s11, {j * 1024}')
        a(f's_add_u32 s12, s9, {j * 2048}')
        a(f'buffer_load_dwordx4 v{vT[1]}, {S(sWB)}, s12 offen lds')
    srd(a, sX, S_X, N * 256)
    a(f's_mul_i32 s{sN0}, s{sG}, 2500')
    a(f's_add_u32 s9, s{sN0}, 2531')
    a(f's_add_u32 s{sN0}, s{sN0}, 31')
    a(f's_lshr_b32 s{sN0}, s{sN0}, 5')
    a('s_lshr_b32 s9, s9, 5')
    a(f's_sub_u32 s{sNG}, s9, s{sN0}')
    a(f'v_lshrrev_b32 v{vT[0]}, 4, v{vLane}')
    a(f's_mul_i32 s12, s{sW}, 12')
    a(f'v_add_u32 v{vT[0]}, s12, v{vT[0]}')
    a(f'v_and_b32 v{vT[2]}, 15, v{vLane}')
    a(f's_mul_i32 s13, s{sW}, 3072')
    a(f's_add_u32 s13, s13, 32768')
    a(f's_lshl_b32 s14, s{sN0}, 8')
    for j in range(3):
        a(f'v_add_u32 v{vT[3]}, {4 * j}, v{vT[0]}')
        a(f'v_and_b32 v{vT[4]}, 15, v{vT[3]}')
        a(f'v_xor_b32 v{vT[4]}, v{vT[4]}, v{vT[2]}')
        a(f'v_lshlrev_b32 v{vT[3]}, 8, v{vT[3]}')
        a(f'v_lshl_add_u32 v{vT[3]}, v{vT[4]}, 4, v{vT[3]}')
        a(f's_add_u32 m0, s13, {j * 1024}')
        a('s_nop 0')
        a(f'buffer_load_dwordx4 v{vT[3]}, {S(sX)}, s14 offen lds')
    srd(a, sT, S_WS, 4 * TQ, off=WS_TBL)
    a('v_bfrev_b32 v107, 1')
    a(f'v_and_b32 v{vC}, 31, v{vLane}')
    a(f'v_lshrrev_b32 v{vHH}, 5, v{vLane}')
    a(f's_and_b32 s8, s{sW}, 1')
    a(f's_bfe_u32 s9, s{sW}, 0x10001')
    a(f'v_bfe_u32 v{vT[0]}, v{vLane}, 2, 2')
    a(f'v_lshl_add_u32 v{vT[1]}, v{vHH}, 3, v{vT[0]}')
    a(f'v_lshlrev_b32 v{vT[1]}, 7, v{vT[1]}')
    a(f'v_bfe_u32 v{vT[2]}, v{vLane}, 4, 1')
    a(f'v_lshlrev_b32 v{vT[2]}, 1, v{vT[2]}')
    a(f'v_bfe_u32 v{vT[3]}, v{vLane}, 1, 1')
    a(f'v_or_b32 v{vT[2]}, v{vT[2]}, v{vT[3]}')
    a('s_lshl_b32 s10, s9, 2')
    a(f'v_or_b32 v{vT[2]}, s10, v{vT[2]}')
    a(f'v_lshrrev_b32 v{vT[3]}, 1, v{vT[0]}')
    a(f'v_lshlrev_b32 v{vT[3]}, 2, v{vT[3]}')
    a(f'v_xor_b32 v{vT[2]}, v{vT[2]}, v{vT[3]}')
    a(f'v_lshl_add_u32 v{vT[1]}, v{vT[2]}, 4, v{vT[1]}')
    a(f'v_and_b32 v{vT[3]}, 1, v{vLane}')
    a(f'v_lshl_add_u32 v{vT[1]}, v{vT[3]}, 3, v{vT[1]}')
    a('s_lshl_b32 s10, s8, 14')
    a(f'v_add_u32 v{vAW}, s10, v{vT[1]}')
    a(f'v_and_b32 v{vT[0]}, 15, v{vC}')
    a(f'v_xor_b32 v{vT[0]}, v{vT[0]}, v{vHH}')
    a(f'v_lshlrev_b32 v{vT[0]}, 4, v{vT[0]}')
    a(f'v_lshl_add_u32 v{vT[0]}, v{vC}, 8, v{vT[0]}')
    a(f's_lshr_b32 s10, s{sW}, 2')
    a('s_lshl_b32 s14, s10, 6')
    a('s_lshl_b32 s10, s10, 14')
    a('s_add_u32 s10, s10, 32768')
    a(f'v_add_u32 v{vAX}, s10, v{vT[0]}')
    a(f's_lshl_b32 s10, s{sH}, 1')
    a('s_add_u32 s10, s10, s9')
    a(f's_mul_i32 s10, s10, {TQ}')
    a('s_lshl_b32 s11, s8, 6')
    a('s_add_u32 s10, s10, s11')
    a(f's_add_u32 s11, s{sN0}, s14')
    a('s_lshl_b32 s11, s11, 7')
    a('s_add_u32 s10, s10, s11')
    a(f'v_lshlrev_b32 v{vSt}, 7, v{vC}')
    a(f'v_lshl_add_u32 v{vSt}, v{vHH}, 4, v{vSt}')
    a(f'v_add_u32 v{vSt}, s10, v{vSt}')
    a('s_cmp_eq_u32 s8, 0')
    a(f's_cselect_b32 s15, {NEG_LOG2E:#x}, 1.0')
    st(a, 2)
    a('s_waitcnt vmcnt(0)')
    st(a, 3)
    a('s_barrier')
    st(a, 4)

    def tile(first, row_off, lds_off):
        for s in range(8):
            if first:
                a(f'ds_read_b64_tr_b16 {V(vW + 4 * s, 2)}, v{vAW} offset:{s * 2048}')
                a(f'ds_read_b64_tr_b16 {V(vW + 4 * s + 2, 2)}, v{vAW} offset:{s * 2048 + 512}')
            a(f'v_xor_b32 v{vT[0]}, {s << 5}, v{vAX}')
            a(f'ds_read_b128 {V(vXo + 4 * s, 4)}, v{vT[0]} offset:{lds_off}')
            n = 3 if first else 1
            if s >= 3:
                k = s - 3
                a(f's_waitcnt lgkmcnt({3 * n})')
                a(mfma(vAcc, vW + 4 * k, vXo + 4 * k, '0' if k == 0 else None))
        for k in range(5, 8):
            n = 3 if first else 1
            a(f's_waitcnt lgkmcnt({(7 - k) * n})')
            a(mfma(vAcc, vW + 4 * k, vXo + 4 * k))
        a(f'v_add_u32 v{vT[1]}, s14, v{vC}')
        if row_off:
            a(f'v_add_u32 v{vT[1]}, {row_off}, v{vT[1]}')
        a(f'v_cmp_gt_u32 vcc, s{sNG}, v{vT[1]}')
        a(f'v_add_u32 v{vT[2]}, {row_off * 128}, v{vSt}')
        a(f'v_cndmask_b32 v{vT[2]}, v107, v{vT[2]}, vcc')
        for i in range(16):
            a(f'v_mul_f32 v{vAcc + i}, s15, v{vAcc + i}')
        for i in range(8):
            a(f'v_cvt_pk_bf16_f32 v{vP + i}, v{vAcc + 2 * i}, v{vAcc + 2 * i + 1}')
        for p in range(2):
            a(f'v_permlane32_swap_b32 v{vP + 4 * p}, v{vP + 4 * p + 2}')
            a(f'v_permlane32_swap_b32 v{vP + 4 * p + 1}, v{vP + 4 * p + 3}')
        for p in range(2):
            a(f'buffer_store_dwordx4 {V(vP + 4 * p, 4)}, v{vT[2]}, {S(sT)}, 0 offen offset:{32 * p}{T1NT}')

    tile(True, 0, 0)
    st(a, 5)
    a(f's_cmp_ge_u32 s{sW}, 4')
    a('s_cbranch_scc1 L_t1_done')
    tile(False, 32, 8192)
    a.label('L_t1_done')
    k1_end(a)


T1NT = ''


def onehot_pairs(a, dst, base_vals, vt, hmul, vC, vHH, vOne16, vZero):
    a(f'v_mul_u32_u24 v{vt}, {hmul}, v{vHH}')
    a(f'v_sub_u32 v{vt}, v{vC}, v{vt}')
    for p, b in enumerate(base_vals):
        a(f'v_subrev_u32 v{vt + 1}, {b}, v{vt}')
        a(f'v_lshlrev_b32 v{vt + 2}, 4, v{vt + 1}')
        a(f'v_lshlrev_b32 v{vt + 2}, v{vt + 2}, v{vOne16}')
        a(f'v_cmp_gt_u32 vcc, 2, v{vt + 1}')
        a(f'v_cndmask_b32 v{dst + p}, v{vZero}, v{vt + 2}, vcc')


def gen_frag(a):
    sWm, sWC, sF = 40, 44, 48
    sW = 3
    vTid, vLane = 0, 1
    vT = [2, 3, 4, 5, 6, 7]
    vR = 8
    vA = 30
    a(f's_cmp_eq_u32 s2, {K1_FR0}')
    a(f's_cselect_b32 s{sWm}, s{S_WA}, s{S_WU}')
    a(f's_cselect_b32 s{sWm + 1}, s{S_WA + 1}, s{S_WU + 1}')
    a(f's_mov_b32 s{sWm + 2}, {128 * 256}')
    a(f's_mov_b32 s{sWm + 3}, {SRD3:#x}')
    srd(a, sWC, S_WC, 16 * 256)
    srd(a, sF, S_WS, WS_END - WS_FR, off=WS_FR)
    a(f'v_lshrrev_b32 v{vT[0]}, 4, v{vLane}')
    a(f'v_and_b32 v{vT[1]}, 15, v{vLane}')
    a(f'v_lshlrev_b32 v{vT[2]}, 2, v{vT[0]}')
    a(f'v_xor_b32 v{vT[1]}, v{vT[1]}, v{vT[2]}')
    a(f'v_lshlrev_b32 v{vT[1]}, 4, v{vT[1]}')
    a(f'v_lshl_add_u32 v{vT[1]}, v{vT[0]}, 8, v{vT[1]}')
    a(f's_lshl_b32 s8, s{sW}, 12')
    for j in range(4):
        a(f's_add_u32 m0, s8, {j * 1024}')
        a(f's_add_u32 s9, s8, {j * 1024}')
        a(f'buffer_load_dwordx4 v{vT[1]}, {S(sWm)}, s9 offen lds')
    a(f's_and_b32 s10, s{sW}, 3')
    a('s_lshl_b32 s9, s10, 10')
    a('s_add_u32 m0, s9, 32768')
    a('s_nop 0')
    a(f'buffer_load_dwordx4 v{vT[1]}, {S(sWC)}, s9 offen lds')
    a(f'v_lshrrev_b32 v{vT[0]}, 5, v{vLane}')
    a(f'v_bfe_u32 v{vT[2]}, v{vLane}, 2, 2')
    a(f'v_lshl_add_u32 v{vT[3]}, v{vT[0]}, 3, v{vT[2]}')
    a(f'v_lshlrev_b32 v{vT[3]}, 8, v{vT[3]}')
    a(f'v_bfe_u32 v{vT[4]}, v{vLane}, 4, 1')
    a(f'v_lshlrev_b32 v{vT[4]}, 1, v{vT[4]}')
    a(f'v_bfe_u32 v{vT[5]}, v{vLane}, 1, 1')
    a(f'v_or_b32 v{vT[4]}, v{vT[4]}, v{vT[5]}')
    a('s_lshl_b32 s11, s10, 2')
    a(f'v_or_b32 v{vT[4]}, s11, v{vT[4]}')
    a(f'v_lshlrev_b32 v{vT[2]}, 2, v{vT[2]}')
    a(f'v_xor_b32 v{vT[4]}, v{vT[4]}, v{vT[2]}')
    a(f'v_lshl_add_u32 v{vT[3]}, v{vT[4]}, 4, v{vT[3]}')
    a(f'v_and_b32 v{vT[5]}, 1, v{vLane}')
    a(f'v_lshl_add_u32 v{vT[3]}, v{vT[5]}, 3, v{vT[3]}')
    a(f's_lshr_b32 s11, s{sW}, 2')
    a('s_lshl_b32 s12, s11, 14')
    a(f'v_add_u32 v{vA}, s12, v{vT[3]}')
    a(f's_cmp_eq_u32 s2, {K1_FR0}')
    a('s_cselect_b32 s12, 0, 8192')
    a(f's_mul_i32 s13, s10, {FRQ}')
    a('s_add_u32 s12, s12, s13')
    a('s_lshl_b32 s14, s11, 12')
    a('s_add_u32 s12, s12, s14')
    a(f'v_lshlrev_b32 v{vT[0]}, 4, v{vLane}')
    a(f'v_add_u32 v{vT[1]}, s12, v{vT[0]}')
    a('s_waitcnt vmcnt(0)')
    a('s_barrier')
    for s in range(4):
        a(f'ds_read_b64_tr_b16 {V(vR + 4 * s, 2)}, v{vA} offset:{s * 4096}')
        a(f'ds_read_b64_tr_b16 {V(vR + 4 * s + 2, 2)}, v{vA} offset:{s * 4096 + 1024}')
    a(f'ds_read_b64_tr_b16 {V(24, 2)}, v{vT[3]} offset:32768')
    a(f'ds_read_b64_tr_b16 {V(26, 2)}, v{vT[3]} offset:{32768 + 1024}')
    a('s_waitcnt lgkmcnt(0)')

    def scale4(r):
        for i in range(4):
            a(f'v_lshlrev_b32 v{32 + 2 * i}, 16, v{r + i}')
            a(f'v_and_b32 v{33 + 2 * i}, 0xffff0000, v{r + i}')
        for i in range(8):
            a(f'v_mul_f32 v{32 + i}, s12, v{32 + i}')
        for i in range(4):
            a(f'v_cvt_pk_bf16_f32 v{r + i}, v{32 + 2 * i}, v{33 + 2 * i}')

    a(f's_cmp_eq_u32 s2, {K1_FR0}')
    a('s_cbranch_scc0 L_fr_u')
    a(f's_mov_b32 s12, {NEG_LOG2E:#x}')
    for s in range(4):
        scale4(vR + 4 * s)
        a(f'buffer_store_dwordx4 {V(vR + 4 * s, 4)}, v{vT[1]}, {S(sF)}, 0 offen offset:{s * 1024}')
    a(f's_cmp_ge_u32 s{sW}, 4')
    a('s_cbranch_scc1 L_fr_done')
    scale4(24)
    a('s_add_u32 s13, s13, 16384')
    a(f'v_add_u32 v{vT[0]}, s13, v{vT[0]}')
    a(f'buffer_store_dwordx4 {V(24, 4)}, v{vT[0]}, {S(sF)}, 0 offen')
    a('s_branch L_fr_done')
    a.label('L_fr_u')
    for s in range(4):
        a(f'buffer_store_dwordx4 {V(vR + 4 * s, 4)}, v{vT[1]}, {S(sF)}, 0 offen offset:{s * 1024}')
    a(f's_cmp_lg_u32 s{sW}, 0')
    a('s_cbranch_scc1 L_fr_done')
    C = 48
    vC, vHH, vOne16, vZero, t = 40, 41, 42, 43, 44
    a(f'v_and_b32 v{vC}, 31, v{vLane}')
    a(f'v_lshrrev_b32 v{vHH}, 5, v{vLane}')
    a(f'v_mov_b32 v{vZero}, 0')
    a(f'v_mov_b32 v{vOne16}, 0x3f80')
    onehot_pairs(a, C, [0, 2, 8, 10], t, 4, vC, vHH, vOne16, vZero)
    onehot_pairs(a, C + 4, [16, 18, 24, 26], t, 4, vC, vHH, vOne16, vZero)
    r_, g2, c1, c0, row4, u = 60, 61, 62, 63, 64, 65
    a(f'v_bfe_u32 v{r_}, v{vLane}, 2, 2')
    a(f'v_bfe_u32 v{g2}, v{vLane}, 4, 1')
    a(f'v_bfe_u32 v{c1}, v{vLane}, 1, 1')
    a(f'v_and_b32 v{c0}, 1, v{vLane}')
    a(f'v_lshl_add_u32 v{row4}, v{vHH}, 2, v{r_}')
    a(f'v_lshl_or_b32 v{u}, v{g2}, 1, v{c1}')
    a(f'v_lshrrev_b32 v{t}, 1, v{r_}')
    a(f'v_lshlrev_b32 v{t}, 2, v{t}')
    a(f'v_xor_b32 v{t}, v{t}, v{u}')
    a(f'v_lshlrev_b32 v{t}, 4, v{t}')
    a(f'v_lshl_add_u32 v{t}, v{row4}, 7, v{t}')
    a(f'v_lshl_add_u32 v{C + 8}, v{c0}, 3, v{t}')
    a(f'v_lshl_or_b32 v{u}, v{g2}, 1, v{c0}')
    a(f'v_xor_b32 v{t}, v{u}, v{vHH}')
    a(f'v_lshlrev_b32 v{t}, 4, v{t}')
    a(f'v_lshl_add_u32 v{t}, v{row4}, 6, v{t}')
    a(f'v_lshl_add_u32 v{C + 9}, v{c1}, 3, v{t}')
    a(f'v_bfe_u32 v{t}, v{vC}, 2, 2')
    a(f'v_xor_b32 v{t}, v{t}, v{vHH}')
    a(f'v_lshlrev_b32 v{t}, 4, v{t}')
    a(f'v_lshl_add_u32 v{C + 10}, v{vC}, 6, v{t}')
    a(f'v_lshlrev_b32 v{t}, 2, v{g2}')
    a(f'v_and_b32 v{u}, 7, v{vLane}')
    a(f'v_xor_b32 v{t}, v{t}, v{u}')
    a(f'v_lshlrev_b32 v{C + 11}, 4, v{t}')
    a(f'v_lshlrev_b32 v{t}, 4, v{vLane}')
    a(f'v_add_u32 v{t}, {WS_CONST - WS_FR}, v{t}')
    for k in range(3):
        a(f'buffer_store_dwordx4 {V(C + 4 * k, 4)}, v{t}, {S(sF)}, 0 offen offset:{k * 1024}')
    a.label('L_fr_done')
    k1_end(a)


def gen_k1(opts=None):
    opts = opts or {}
    a = Asm()
    global STAMPS, NT, T1NT
    STAMPS = int(opts.get('stamps', 0))
    FL = {'0': '', '1': ' nt', 'sc1': ' sc1', 'sc01': ' sc0 sc1', 'sc1nt': ' sc1 nt'}
    NT = FL[opts.get('nt', '0')]
    T1NT = FL[opts.get('t1nt', '0')]
    a(f's_cmp_ge_u32 s2, {K1_END}')
    a('s_cbranch_scc1 L_k1_exit')
    if STAMPS:
        a('s_memrealtime s[68:69]')
    load_kernargs(a)
    a('v_and_b32 v1, 63, v0')
    a('v_lshrrev_b32 v2, 6, v0')
    a('v_readfirstlane_b32 s3, v2')
    a('s_waitcnt lgkmcnt(0)')
    shift_ws(a, opts)
    a(f's_cmp_ge_u32 s2, {K1_FR0}')
    a('s_cbranch_scc1 L_k1_frag')
    a(f's_cmp_ge_u32 s2, {K1_T10}')
    a('s_cbranch_scc1 L_k1_t1')
    gen_bin(a)
    a.label('L_k1_t1')
    gen_t1(a)
    a.label('L_k1_frag')
    gen_frag(a)
    a.label('L_k1_exit')
    a('s_endpgm')
    return a
```

```python
from asm import Asm
from common import *
from k1 import onehot_pairs

K2_GRID = 256
CAP = 416
CAPP = 512

L_EIDX = 0
L_SRC = 8192
L_OAD = 12288
L_DELTA = 16384
L_CNT = 18432
L_O = 18688
O_STRIDE = 2048
L_FR = L_O + 8 * O_STRIDE
L_RING = 70656
L_XR = L_RING + 8 * 8192
K2_LDS = L_XR + 96 * 256
assert L_FR + 2 * FRQ <= L_RING and K2_LDS <= 163840
DUMMY_POS2 = 62

sW, sG, sH, sB4, sQ, sB, sNB0, sNBN = 3, 4, 5, 6, 7, 8, 9, 10
sX, sT, sE, sWS, sOut = 40, 44, 48, 52, 56
sTiles, sCnt, sRound, sRounds, sRing, sOb, sXr, sLeft = 60, 61, 62, 63, 64, 65, 66, 67
sM512, sCAP, sRo, sFr, sSlow = 68, 69, 70, 71, 72
sPF = 76

vLane, vC, vHH = 1, 2, 3
vASrc, vAEi, vAOd = 4, 5, 6
vO0a, vO1a, vOTa, vOTb, vRB, vRH = 7, 8, 9, 10, 11, 12
vOne16, vZero = 13, 14
vOA = [15, 16]
vT0 = 17
vEI = 20
vIx = 22
vPF = 30
DEN, NUM = 32, 48
G = [64, 80]
H = [96, 112]
EP, MP = 128, 136
AP, WC = 144, 152
I0, I1 = 156, 160
BP, HP, OO = 164, 172, 180
SS = [188, 196]
EE = [204, 208]
UU = 212
vKeep = list(range(228, 242))
K2_VGPR = 243
kS = vKeep[0:4]
kEnd = vKeep[4:8]
kD0, kD1, kCb, kDc = vKeep[8:12]
vOcX, vOcC = vKeep[12:14]
vStamp = 242
vRec = [G[0] + i for i in range(8)]
vEi = [G[0] + 8 + i for i in range(8)]
vDl = [BP + i for i in range(8)]
vB4r = [HP + i for i in range(8)]
vP = [SS[0] + i for i in range(4)]
vL15 = SS[0] + 4
vOFF = OO
CONST = SS[1]


def dummy_fill(a):
    a(f'v_lshlrev_b32 v{vT0}, 4, v0')
    for i in range(4):
        a(f'v_mov_b32 v{BP + i}, -1')
    a(f'ds_write_b128 v{vT0}, {V(BP, 4)} offset:{L_EIDX}')
    a(f'v_lshlrev_b32 v{vT0 + 1}, 3, v0')
    a(f'ds_write_b64 v{vT0 + 1}, {V(BP, 2)} offset:{L_SRC}')
    a(f'v_mov_b32 v{BP + 4}, {DUMMY_POS2 | DUMMY_POS2 << 16:#x}')
    a(f'v_mov_b32 v{BP + 5}, {DUMMY_POS2 | DUMMY_POS2 << 16:#x}')
    a(f'ds_write_b64 v{vT0 + 1}, {V(BP + 4, 2)} offset:{L_OAD}')


def issue_rec_loads(a):
    for u in range(2):
        for k in range(4):
            i = 4 * u + k
            if u:
                a(f'v_add_u32 v{vT0}, 16, v{vP[k]}')
                src = vT0
            else:
                src = vP[k]
            a(f'v_cmp_lt_u32 vcc, v{src}, v{kEnd[k]}')
            a(f'v_add_u32 v{vEi[i]}, v{src}, v{kCb}')
            if k:
                a(f'v_add_u32 v{vEi[i]}, {k * 4 * CH}, v{vEi[i]}')
            a(f'v_cndmask_b32 v{vEi[i]}, v{vL15 + 1}, v{vEi[i]}, vcc')
            a(f'v_lshlrev_b32 v{vT0 + 1}, 2, v{vEi[i]}')
            a(f'buffer_load_dword v{vRec[i]}, v{vT0 + 1}, {S(sWS)}, s15 offen')


def list_writes(a, i, lp):
    a(f'v_lshlrev_b32 v{vT0}, 2, v{lp}')
    a(f'v_lshlrev_b32 v{vT0 + 1}, 1, v{lp}')
    a('s_mov_b64 exec, vcc')
    a(f'ds_write_b32 v{vT0}, v{vEi[i]} offset:{L_EIDX}')
    a(f'ds_write_b16 v{vT0 + 1}, v{vRec[i]} offset:{L_SRC}')
    a(f'ds_write_b16_d16_hi v{vT0 + 1}, v{vRec[i]} offset:{L_OAD}')
    a('s_mov_b64 exec, -1')


def delta_reads(a):
    for i in range(8):
        k = i & 3
        a(f'v_bfe_u32 v{vB4r[i]}, v{vRec[i]}, 22, 2')
        a(f'v_lshl_add_u32 v{vT0}, v{vB4r[i]}, 2, v{kDc}')
        a(f'ds_read_b32 v{vDl[i]}, v{vT0} offset:{L_DELTA + 64 * k}')


def placement_general(a, tag):
    a('s_waitcnt vmcnt(0)')
    delta_reads(a)
    a('s_waitcnt lgkmcnt(0)')
    for i in range(8):
        k = i & 3
        lp = vDl[i]
        a(f'v_sub_u32 v{vT0}, v{vEi[i]}, v{kCb}')
        if k:
            a(f'v_subrev_u32 v{vT0}, {k * 4 * CH}, v{vT0}')
        a(f'v_sub_u32 v{vT0}, v{vT0}, v{kS[k]}')
        a(f'v_add_u32 v{lp}, v{vT0}, v{lp}')
        a(f'v_mad_i32_i24 v{vT0}, v{vB4r[i]}, s{sM512}, v{lp}')
        a(f'v_cmp_gt_u32 vcc, s{sCAP}, v{vT0}')
        a(f's_cbranch_vccz L_pl_{tag}_{i}')
        list_writes(a, i, lp)
        a.label(f'L_pl_{tag}_{i}')


def placement_fast(a):
    delta_reads(a)
    a('s_waitcnt lgkmcnt(0)')
    for i in range(8):
        lp = vDl[i]
        a(f'v_cmp_ne_u32 vcc, -1, v{vRec[i]}')
        if i >= 4:
            a(f's_cbranch_vccz L_plf_{i}')
        if i < 4:
            a(f'v_add_u32 v{lp}, v{vL15}, v{lp}')
        else:
            a(f'v_add3_u32 v{lp}, v{vL15}, v{lp}, 16')
        list_writes(a, i, lp)
        if i >= 4:
            a.label(f'L_plf_{i}')


def general_round(a, tag):
    a(f'v_and_b32 v{vL15}, 15, v{vLane}')
    a(f'v_mov_b32 v{vL15 + 1}, 0x20000000')
    a(f's_mov_b32 s15, {WS_REC}')
    for k in range(4):
        a(f'v_add_u32 v{vP[k]}, v{kS[k]}, v{vL15}')
    a.label(f'L_more_{tag}')
    issue_rec_loads(a)
    placement_general(a, tag)
    for k in range(4):
        a(f'v_add_u32 v{vP[k]}, 32, v{vP[k]}')
    a(f'v_cmp_lt_u32 s[12:13], v{vP[0]}, v{kEnd[0]}')
    for k in range(1, 4):
        a(f'v_cmp_lt_u32 vcc, v{vP[k]}, v{kEnd[k]}')
        a('s_or_b64 s[12:13], s[12:13], vcc')
    a('s_cmp_lg_u64 s[12:13], 0')
    a(f's_cbranch_scc1 L_more_{tag}')


def load_seg_ends(a):
    a(f'v_lshrrev_b32 v{vT0}, 3, v{kDc}')
    a(f's_lshl_b32 s11, s{sG}, 10')
    a(f's_add_u32 s11, s11, {WS_OFF + 1024}')
    for k in range(4):
        a(f'buffer_load_ushort v{kEnd[k]}, v{vT0}, {S(sWS)}, s11 offen offset:{8 * k}')
    a('s_waitcnt vmcnt(0)')


def set_tiles(a):
    a(f's_mul_i32 s11, s{sRound}, {CAP}')
    a(f's_sub_i32 s11, s{sCnt}, s11')
    a('s_max_i32 s11, s11, 0')
    a(f's_min_i32 s11, s11, {CAP}')
    a('s_add_u32 s11, s11, 31')
    a(f's_lshr_b32 s{sTiles}, s11, 5')


def list_addrs(a):
    a(f's_lshl_b32 s11, s{sB4}, 9')
    a(f'v_lshrrev_b32 v{vT0}, 3, v{vLane}')
    a(f'v_add_lshl_u32 v{vASrc}, v{vT0}, s11, 1')
    a(f'v_add_lshl_u32 v{vAEi}, v{vC}, s11, 2')
    a(f'v_lshrrev_b32 v{vAOd}, 1, v{vAEi}')


def idx_reads(a, tile_off):
    for j in range(4):
        a(f'ds_read_u16 v{vIx + 2 * j}, v{vASrc} offset:{L_SRC + tile_off * 64 + j * 16}')
    a(f'ds_read_b32 v{vEI}, v{vAEi} offset:{L_EIDX + tile_off * 128}')


def oad_read(a, dst, tile_off):
    a(f'ds_read_u16 v{dst}, v{vAOd} offset:{L_OAD + tile_off * 64}')


def oad_fix(r):
    return [f'v_bitop3_b32 v{r}, v{r}, v{vOcX}, 62 bitop3:0x28', f'v_add_u32 v{r}, v{vOcC}, v{r}']


def dma(slot, esel):
    out = []
    for j in range(4):
        out.append(f's_add_u32 m0, s{sRing}, {slot * 4096 + j * 1024}')
        out.append(f'buffer_load_dwordx4 {V(vIx + 2 * j, 2)}, {S(sT)}, 0 idxen offen lds')
    out.append(f'buffer_load_dwordx4 {V(EE[esel], 4)}, {V(vEI, 2)}, {S(sE)}, 0 idxen offen')
    return out


def operand_reads(slot, sp, oa):
    o = [f'ds_write_b16 v{oa}, v{vOne16}']
    o += [f'ds_read_b128 {V(OO, 4)}, v{vO0a}', f'ds_read_b128 {V(OO + 4, 4)}, v{vO1a}']
    o += [f'ds_read_b64_tr_b16 {V(BP + 2 * i, 2)}, v{vRB} offset:{slot * 4096 + i * 1024}' for i in range(4)]
    o += [f'ds_read_b64_tr_b16 {V(HP + 2 * i, 2)}, v{vRH} offset:{slot * 4096 + i * 1024}' for i in range(4)]
    o += [f'ds_read_b64_tr_b16 {V(SS[sp] + 2 * i, 2)}, v{vOTb if i & 1 else vOTa} offset:{i * 512}' for i in range(4)]
    o += [f'ds_write_b16 v{oa}, v{vZero}']
    return o


def m1(p):
    return [(None, mfma(G[p], EE[p], WC, '0')),
            ('lgkmcnt(13)', mfma(G[p], OO, AP)),
            (None, mfma(G[p], OO + 4, AP + 4)),
            ('lgkmcnt(9)', mfma(G[p], I0, BP)),
            (None, mfma(G[p], I1, BP + 4)),
            ('lgkmcnt(5)', mfma(H[p], I0, HP, '0')),
            (None, mfma(H[p], I1, HP + 4))]


def valu_tile(p):
    g, h = G[p], H[p]
    out = []
    for half in range(2):
        r = range(8 * half, 8 * half + 8)
        out += [f'v_exp_f32 v{g + i}, v{g + i}' for i in r]
        out += [f'v_add_f32 v{g + i}, 1.0, v{g + i}' for i in r]
        out += [f'v_rcp_f32 v{g + i}, v{g + i}' for i in r]
        out += [f'v_mul_f32 v{h + i}, v{g + i}, v{h + i}' for i in r]
        out += [f'v_cvt_pk_bf16_f32 v{EP + i // 2}, v{g + i}, v{g + i + 1}' for i in r if i % 2 == 0]
        out += [f'v_cvt_pk_bf16_f32 v{MP + i // 2}, v{h + i}, v{h + i + 1}' for i in r if i % 2 == 0]
    return out


def m2(sp, half):
    o = 4 * half
    return [mfma(DEN, EP + o, SS[sp] + o), mfma(NUM, MP + o, SS[sp] + o)]


def iteration(a, p, opts):
    q = 1 - p
    V_ = valu_tile(p)
    ins = {i: [] for i in range(-1, 81)}
    lead = ['s_waitcnt lgkmcnt(0)'] + oad_fix(vOA[q])
    d = dma(p, p)
    m2b = m2(q, 1)
    ins[0] += lead + d[0:2]
    ins[1] += d[2:4] + [m2b[0]]
    ins[2] += d[4:6]
    ins[3] += d[6:9]
    tmp = Asm()
    idx_reads(tmp, p + 3)
    oad_read(tmp, vOA[p], p + 2)
    idx = [i.text for i in tmp.ins]
    ins[4] += idx[0:2]
    ins[5] += idx[2:4] + [m2b[1]]
    ins[6] += idx[4:6]
    rd = operand_reads(q, q, vOA[q])
    ins[8] += ['s_waitcnt vmcnt(5)'] + rd[0:3]
    ins[10] += rd[3:5]
    ins[11] += rd[5:7]
    ins[12] += rd[7:9]
    ins[13] += rd[9:11]
    ins[14] += rd[11:13]
    ins[15] += rd[13:16]
    mm = m1(q)
    pos = [17, 24, 30, 50, 56, 62, 68]
    for (w, m), s in zip(mm, pos):
        if w:
            ins[s].append(f's_waitcnt {w}')
        ins[s].append(m)
    m2a = m2(p, 0)
    ins[42] += [m2a[0]]
    ins[46] += [m2a[1]]
    for i in range(80):
        a(ins[i])
        a(V_[i])
    if p == 1:
        a(f'v_add_u32 v{vASrc}, 128, v{vASrc}')
        a(f'v_add_u32 v{vAEi}, 256, v{vAEi}')
        a(f'v_add_u32 v{vAOd}, 128, v{vAOd}')


STAMP0 = 84


def gen_k2(opts):
    a = Asm()
    stamps = int(opts.get('stamps', 0))
    nst = [0]

    def stamp(cyc=None):
        if stamps:
            a(f's_memrealtime s[{STAMP0}:{STAMP0 + 1}]')
            if cyc is not None:
                a(f's_memtime s[{STAMP0 + 2}:{STAMP0 + 3}]')
            a('s_waitcnt lgkmcnt(0)')
            a(f'v_writelane_b32 v{vStamp}, s{STAMP0}, {nst[0]}')
            if cyc is not None:
                a(f'v_writelane_b32 v{vStamp}, s{STAMP0 + 2}, {cyc}')
            nst[0] += 1

    a(f's_cmp_ge_u32 s2, {K2_GRID}')
    a('s_cbranch_scc1 L_k2_exit')
    stamp()
    load_kernargs(a)
    a(f'v_and_b32 v{vLane}, 63, v0')
    a(f'v_lshrrev_b32 v{vT0}, 6, v0')
    a(f'v_readfirstlane_b32 s{sW}, v{vT0}')
    a(f'v_and_b32 v{vC}, 31, v{vLane}')
    a(f'v_lshrrev_b32 v{vHH}, 5, v{vLane}')
    a(f'v_mov_b32 v{vZero}, 0')
    a(f'v_mov_b32 v{vOne16}, 0x3f80')
    wg_to_group(a, 2, sG, sH)
    a(f's_lshr_b32 s11, s{sW}, 2')
    a(f's_lshl_b32 s12, s11, 1')
    a(f's_add_u32 s12, s12, s{sW}')
    a(f's_and_b32 s{sB4}, s12, 3')
    a(f's_lshl_b32 s{sQ}, s{sH}, 1')
    a(f's_add_u32 s{sQ}, s{sQ}, s11')
    a(f's_lshl_b32 s{sB}, s{sG}, 2')
    a(f's_add_u32 s{sB}, s{sB}, s{sB4}')
    a(f'v_and_b32 v{vL15}, 15, v{vLane}')
    a(f'v_lshrrev_b32 v{vT0}, 4, v{vLane}')
    a(f's_lshl_b32 s11, s{sW}, 4')
    a(f'v_add_u32 v{vT0}, s11, v{vT0}')
    a(f'v_mul_u32_u24 v{kCb}, {CH}, v{vT0}')
    a(f'v_lshlrev_b32 v{kDc}, 4, v{vT0}')
    a(f'v_lshlrev_b32 v{vPF}, 7, v{vT0}')
    a(f'v_lshl_add_u32 v{vPF}, v{vL15}, 2, v{vPF}')
    a(f'v_lshlrev_b32 v{vPF + 1}, 1, v{vT0}')
    a(f'v_lshlrev_b32 v{vEI}, 2, v{vLane}')
    dummy_fill(a)
    a(f's_lshl_b32 s{sOb}, s{sW}, 11')
    a(f's_add_u32 s{sOb}, s{sOb}, {L_O}')
    a(f'v_lshlrev_b32 v{vT0}, 5, v{vLane}')
    a(f'v_add_u32 v{vT0}, s{sOb}, v{vT0}')
    for i in range(4):
        a(f'v_mov_b32 v{HP + i}, 0')
    a(f'ds_write_b128 v{vT0}, {V(HP, 4)}')
    a(f'ds_write_b128 v{vT0}, {V(HP, 4)} offset:16')
    a(f's_lshl_b32 s12, s{sG}, 10')
    a(f's_add_u32 s12, s12, {WS_OFF}')
    a(f's_lshl_b32 s13, s{sB4}, 8')
    a('s_add_u32 s13, s13, s12')
    a(f's_mov_b32 s14, {WS_OFF + 513 * 256}')
    a(f's_lshl_b32 s15, s{sG}, 14')
    a(f's_add_u32 s15, s15, {WS_REC2}')
    a('s_waitcnt lgkmcnt(0)')
    shift_ws(a, opts)
    stamp()
    srd(a, sWS, S_WS, WS_END)
    a(f'buffer_load_dword v{vOFF}, v{vEI}, {S(sWS)}, s13 offen')
    a(f'buffer_load_dword v{vOFF + 1}, v{vEI}, {S(sWS)}, s13 offen offset:256')
    a(f'buffer_load_dword v{vOFF + 2}, v{vEI}, {S(sWS)}, s12 offen')
    a(f'buffer_load_dword v{vOFF + 3}, v{vEI}, {S(sWS)}, s14 offen')
    for k in range(4):
        a(f'buffer_load_ushort v{kS[k]}, v{vPF + 1}, {S(sWS)}, s12 offen offset:{8 * k}')
    for i in range(8):
        a(f'buffer_load_dword v{vRec[i]}, v{vPF}, {S(sWS)}, s15 offen offset:{512 * (i & 3) + 64 * (i >> 2)}')
    a('s_barrier')
    srd(a, sX, S_X, N * 256)
    a(f's_mul_i32 s11, s{sG}, 2500')
    a('s_add_u32 s11, s11, 31')
    a('s_lshr_b32 s11, s11, 5')
    a(f's_mul_i32 s12, s{sB}, 625')
    a('s_add_u32 s13, s12, 656')
    a('s_add_u32 s12, s12, 31')
    a(f's_lshr_b32 s{sNB0}, s12, 5')
    a('s_lshr_b32 s13, s13, 5')
    a(f's_sub_u32 s{sNBN}, s13, s{sNB0}')
    a(f's_sub_u32 s{sRo}, s{sNB0}, s11')
    a('s_lshl_b32 s11, s11, 8')
    a(f'v_lshrrev_b32 v{vT0 + 1}, 4, v{vLane}')
    a(f's_lshl_b32 s12, s{sW}, 2')
    a(f'v_add_u32 v{vT0 + 1}, s12, v{vT0 + 1}')
    a(f's_lshl_b32 s13, s{sW}, 10')
    a(f's_add_u32 s13, s13, {L_XR}')
    for j in range(3):
        a(f'v_add_u32 v{BP}, {32 * j}, v{vT0 + 1}')
        a(f'v_and_b32 v{BP + 1}, 15, v{BP}')
        a(f'v_xor_b32 v{BP + 1}, v{BP + 1}, v{vL15}')
        a(f'v_lshlrev_b32 v{BP}, 8, v{BP}')
        a(f'v_lshl_add_u32 v{BP}, v{BP + 1}, 4, v{BP}')
        a(f's_add_u32 m0, s13, {j * 8192}')
        a('s_nop 0')
        a(f'buffer_load_dwordx4 v{BP}, {S(sX)}, s11 offen lds')
    a(f'v_lshlrev_b32 v{vT0}, 4, v{vLane}')
    a(f's_mul_i32 s11, s{sH}, {2 * FRQ}')
    a(f's_add_u32 s11, s11, {WS_FR}')
    a(f's_lshl_b32 s12, s{sW}, 10')
    a('s_add_u32 s11, s11, s12')
    a(f's_add_u32 s12, s12, {L_FR}')
    for j in range(4):
        a(f's_add_u32 m0, s12, {j * 8192}')
        if j:
            a('s_add_u32 s11, s11, 8192')
        else:
            a('s_nop 0')
        a(f'buffer_load_dwordx4 v{vT0}, {S(sWS)}, s11 offen lds')
    NDMA = 3 + 4
    a(f's_cmp_ge_u32 s{sW}, 2')
    a('s_cbranch_scc1 L_no5')
    a(f's_add_u32 m0, s12, 32768')
    a('s_add_u32 s11, s11, 8192')
    a(f'buffer_load_dwordx4 v{vT0}, {S(sWS)}, s11 offen lds')
    a.label('L_no5')
    NPF = int(opts.get('prefetch', 0))
    if NPF:
        a(f's_mul_i32 s11, s{sH}, {2 * TQ}')
        a(f's_add_u32 s{sPF}, s{S_WS}, s11')
        a(f's_addc_u32 s{sPF + 1}, s{S_WS + 1}, 0')
        a(f's_mov_b32 s{sPF + 2}, {2 * TQ}')
        a(f's_mov_b32 s{sPF + 3}, {SRD3:#x}')
        a('s_lshr_b32 s11, s2, 3')
        a('s_lshl_b32 s11, s11, 3')
        a(f's_add_u32 s11, s11, s{sW}')
        a('s_lshl_b32 s11, s11, 7')
        a(f'v_lshlrev_b32 v{vT0}, 15, v{vLane}')
        a(f'buffer_load_dword v{vPF}, v{vT0}, {S(sPF)}, s11 offen')
        if NPF > 1:
            a(f's_add_u32 s11, s11, {64 << 15}')
            a(f'buffer_load_dword v{vPF + 1}, v{vT0}, {S(sPF)}, s11 offen')
    onehot_pairs(a, I0, [0, 2, 8, 10], vT0, 4, vC, vHH, vOne16, vZero)
    onehot_pairs(a, I1, [16, 18, 24, 26], vT0, 4, vC, vHH, vOne16, vZero)
    a(f's_lshl_b32 s{sRing}, s{sW}, 13')
    a(f's_add_u32 s{sRing}, s{sRing}, {L_RING}')
    r_, g2, c1, c0, row4, u, t_ = BP, BP + 1, BP + 2, BP + 3, BP + 4, BP + 5, BP + 6
    a(f'v_bfe_u32 v{r_}, v{vLane}, 2, 2')
    a(f'v_bfe_u32 v{g2}, v{vLane}, 4, 1')
    a(f'v_bfe_u32 v{c1}, v{vLane}, 1, 1')
    a(f'v_and_b32 v{c0}, 1, v{vLane}')
    a(f'v_lshl_add_u32 v{row4}, v{vHH}, 2, v{r_}')
    a(f'v_lshl_or_b32 v{u}, v{g2}, 1, v{c1}')
    a(f'v_lshrrev_b32 v{t_}, 1, v{r_}')
    a(f'v_lshlrev_b32 v{t_}, 2, v{t_}')
    a(f'v_xor_b32 v{t_}, v{t_}, v{u}')
    a(f'v_lshlrev_b32 v{t_}, 4, v{t_}')
    a(f'v_lshl_add_u32 v{t_}, v{row4}, 7, v{t_}')
    a(f'v_lshl_add_u32 v{t_}, v{c0}, 3, v{t_}')
    a(f'v_add_u32 v{vRB}, s{sRing}, v{t_}')
    a(f'v_xor_b32 v{vRH}, 64, v{vRB}')
    a(f'v_lshl_or_b32 v{u}, v{g2}, 1, v{c0}')
    a(f'v_xor_b32 v{t_}, v{u}, v{vHH}')
    a(f'v_lshlrev_b32 v{t_}, 4, v{t_}')
    a(f'v_lshl_add_u32 v{t_}, v{row4}, 6, v{t_}')
    a(f'v_lshl_add_u32 v{t_}, v{c1}, 3, v{t_}')
    a(f'v_add_u32 v{vOTa}, s{sOb}, v{t_}')
    a(f'v_xor_b32 v{vOTb}, 32, v{vOTa}')
    a(f'v_bfe_u32 v{t_}, v{vC}, 2, 2')
    a(f'v_lshlrev_b32 v{vOcX}, 4, v{t_}')
    a(f'v_lshl_add_u32 v{vOcC}, v{vC}, 6, s{sOb}')
    a(f'v_xor_b32 v{t_}, v{t_}, v{vHH}')
    a(f'v_lshl_add_u32 v{vO0a}, v{t_}, 4, v{vOcC}')
    a(f'v_xor_b32 v{vO1a}, 32, v{vO0a}')
    a(f'v_lshlrev_b32 v{t_}, 2, v{g2}')
    a(f'v_and_b32 v{u}, 7, v{vLane}')
    a(f'v_xor_b32 v{t_}, v{t_}, v{u}')
    a(f'v_lshlrev_b32 v{vIx + 1}, 4, v{t_}')
    for j in range(1, 4):
        a(f'v_mov_b32 v{vIx + 2 * j + 1}, v{vIx + 1}')
    a(f'v_lshlrev_b32 v{vEI + 1}, 4, v{vHH}')
    a(f's_mul_i32 s11, s{sQ}, {TQ}')
    a(f's_add_u32 s{sT}, s{S_WS}, s11')
    a(f's_addc_u32 s{sT + 1}, s{S_WS + 1}, 0')
    a(f's_or_b32 s{sT + 1}, s{sT + 1}, {128 << 16}')
    a(f's_mov_b32 s{sT + 2}, {N}')
    a(f's_mov_b32 s{sT + 3}, {SRD3:#x}')
    srd(a, sE, S_WS, E, off=WS_ES, stride=32)
    srd(a, sOut, S_OUT, N * 256)
    a(f's_movk_i32 s{sM512}, -512')
    a(f's_movk_i32 s{sCAP}, {CAP}')
    a(f's_mov_b32 s{sRound}, 0')
    a(f's_lshr_b32 s11, s{sW}, 2')
    a(f's_mul_i32 s{sFr}, s11, {FRQ}')
    a(f's_add_u32 s{sFr}, s{sFr}, {L_FR}')
    list_addrs(a)
    REST = 4 + 8 + NDMA + NPF
    a(f's_waitcnt vmcnt({REST})')
    stamp()
    o0, o1, o2 = vOFF, vOFF + 1, vOFF + 2
    t = [OO + 4, OO + 5, OO + 6, OO + 7, vT0, vT0 + 1, vT0 + 2]
    a(f'v_cmp_ne_u32 vcc, 0, v{vOFF + 3}')
    a(f'v_and_b32 v{t[0]}, 0xffff, v{o0}')
    a(f'v_lshrrev_b32 v{t[1]}, 16, v{o0}')
    a(f's_cmp_lg_u64 vcc, 0')
    a(f's_cselect_b32 s{sSlow}, 1, 0')
    a(f'v_and_b32 v{t[2]}, 0xffff, v{o1}')
    a(f'v_lshrrev_b32 v{t[3]}, 16, v{o1}')
    a(f'v_sub_u32 v{t[2]}, v{t[2]}, v{t[0]}')
    a(f'v_sub_u32 v{t[3]}, v{t[3]}, v{t[1]}')
    a(f'v_add_u32 v{t[3]}, v{t[2]}, v{t[3]}')
    a(f'v_mov_b32 v{t[4]}, v{t[3]}')
    wave_scan_incl(a, t[4])
    a(f'v_readlane_b32 s{sCnt}, v{t[4]}, 63')
    a(f'v_sub_u32 v{t[4]}, v{t[4]}, v{t[3]}')
    a(f's_lshl_b32 s11, s{sB4}, 9')
    a(f'v_add_u32 v{t[4]}, s11, v{t[4]}')
    a(f'v_and_b32 v{t[5]}, 0xffff, v{o2}')
    a(f'v_sub_u32 v{t[5]}, v{t[5]}, v{t[0]}')
    a(f'v_add_u32 v{kD0}, v{t[4]}, v{t[5]}')
    a(f'v_lshrrev_b32 v{t[5]}, 16, v{o2}')
    a(f'v_sub_u32 v{t[5]}, v{t[5]}, v{t[1]}')
    a(f'v_add3_u32 v{kD1}, v{t[4]}, v{t[2]}, v{t[5]}')
    a(f'v_lshlrev_b32 v{vT0}, 5, v{vLane}')
    a(f's_lshl_b32 s11, s{sB4}, 2')
    a(f'v_add_u32 v{vT0}, s11, v{vT0}')
    a(f'ds_write_b32 v{vT0}, v{kD0} offset:{L_DELTA}')
    a(f'ds_write_b32 v{vT0}, v{kD1} offset:{L_DELTA + 16}')
    a(f'v_mov_b32 v{vT0 + 1}, s{sCnt}')
    a(f'v_mov_b32 v{vT0 + 2}, s11')
    a(f'ds_write_b32 v{vT0 + 2}, v{vT0 + 1} offset:{L_CNT}')
    a(f's_waitcnt vmcnt({REST - 4})')
    a(f'v_add_u32 v{vT0}, v{kCb}, v{vL15}')
    for k in range(4):
        a(f'v_add_u32 v{vEi[k]}, v{kS[k]}, v{vT0}')
        if k:
            a(f'v_add_u32 v{vEi[k]}, {k * 4 * CH}, v{vEi[k]}')
        a(f'v_add_u32 v{vEi[4 + k]}, 16, v{vEi[k]}')
    a('s_waitcnt lgkmcnt(0)')
    a('s_barrier')
    stamp()
    a(f'ds_read_b128 {V(SS[0], 4)}, v{vZero} offset:{L_CNT}')
    a(f's_waitcnt vmcnt({NDMA + NPF})')
    a('s_waitcnt lgkmcnt(0)')
    a(f'v_max_u32 v{SS[0]}, v{SS[0]}, v{SS[0] + 1}')
    a(f'v_max3_u32 v{SS[0]}, v{SS[0]}, v{SS[0] + 2}, v{SS[0] + 3}')
    a(f'v_readfirstlane_b32 s11, v{SS[0]}')
    a(f's_cmp_gt_u32 s11, {CAP}')
    a(f's_cselect_b32 s{sSlow}, 1, s{sSlow}')
    a(f's_add_u32 s11, s11, {CAP - 1}')
    a(f's_mov_b32 s12, {(1 << 32) // CAP + 1}')
    a(f's_mul_hi_u32 s{sRounds}, s11, s12')
    a(f's_cmp_lg_u32 s{sSlow}, 0')
    a('s_cbranch_scc1 L_slow0')
    placement_fast(a)
    a.label('L_placed0')
    stamp()
    set_tiles(a)
    a(f's_waitcnt vmcnt({NPF}) lgkmcnt(0)')
    a('s_barrier')

    a.label('L_pipe')
    idx_reads(a, 0)
    oad_read(a, vOA[0], 0)
    oad_read(a, vOA[1], 1)
    a('s_waitcnt lgkmcnt(2)')
    a(dma(0, 0))
    idx_reads(a, 1)
    a(f's_cmp_lg_u32 s{sRound}, 0')
    a('s_cbranch_scc1 L_node_done')
    a(f'v_add_u32 v{vT0}, s{sRo}, v{vC}')
    a(f'v_and_b32 v{vT0 + 1}, 15, v{vT0}')
    a(f'v_xor_b32 v{vT0 + 1}, v{vT0 + 1}, v{vHH}')
    a(f'v_lshlrev_b32 v{vT0 + 1}, 4, v{vT0 + 1}')
    a(f'v_lshl_add_u32 v{vT0}, v{vT0}, 8, v{vT0 + 1}')
    a(f'v_add_u32 v{vT0}, {L_XR}, v{vT0}')
    a(f'v_lshl_add_u32 v{vT0 + 2}, v{vLane}, 4, s{sFr}')
    XA = [G[1] + 4 * i for i in range(4)] + [H[1] + 4 * i for i in range(4)]
    WA = [BP, BP + 4, HP, HP + 4]
    WU = [OO, OO + 4, SS[0], SS[0] + 4]
    a(f'ds_read_b128 {V(WC, 4)}, v{vT0 + 2} offset:16384')
    for s in range(8):
        a(f'v_xor_b32 v{vT0 + 1}, {s << 5}, v{vT0}')
        a(f'ds_read_b128 {V(XA[s], 4)}, v{vT0 + 1}')
        a(f'ds_read_b128 {V(WA[s & 3], 4)}, v{vT0 + 2} offset:{s * 1024}')
        a(f'ds_read_b128 {V(WU[s & 3], 4)}, v{vT0 + 2} offset:{8192 + s * 1024}')
        if s >= 2:
            k = s - 2
            a('s_waitcnt lgkmcnt(6)')
            a(mfma(G[0], XA[k], WA[k & 3], '0' if k == 0 else None))
            a(mfma(UU, WU[k & 3], XA[k], '0' if k == 0 else None))
    for k in (6, 7):
        a(f's_waitcnt lgkmcnt({3 * (7 - k)})')
        a(mfma(G[0], XA[k], WA[k & 3]))
        a(mfma(UU, WU[k & 3], XA[k]))
    for i in range(4):
        a(f'v_mov_b32 v{EP + 4 + i}, 0')
    a(mfma(DEN, EP + 4, EP + 4, '0'))
    a(mfma(NUM, EP + 4, EP + 4, '0'))
    for i in range(8):
        a(f'v_cvt_pk_bf16_f32 v{AP + i}, v{G[0] + 2 * i}, v{G[0] + 2 * i + 1}')
    a.label('L_node_done')
    a('s_waitcnt lgkmcnt(0)')
    a(dma(1, 1))
    idx_reads(a, 2)
    stamp()
    a(f's_cmp_eq_u32 s{sTiles}, 0')
    a('s_cbranch_scc1 L_round_end')
    for i in range(4):
        a(f'v_mov_b32 v{SS[1] + 4 + i}, 0')
        a(f'v_mov_b32 v{EP + 4 + i}, 0')
        a(f'v_mov_b32 v{MP + 4 + i}, 0')
    a(oad_fix(vOA[0]))
    a('s_waitcnt vmcnt(5)')
    a(operand_reads(0, 0, vOA[0]))
    for w, m in m1(0):
        if w:
            a(f's_waitcnt {w}')
        a(m)
    stamp(13)
    a(f's_mov_b32 s{sLeft}, s{sTiles}')
    a.label('L_loop')
    iteration(a, 0, opts)
    a(f's_sub_u32 s{sLeft}, s{sLeft}, 1')
    a(f's_cmp_eq_u32 s{sLeft}, 0')
    a('s_cbranch_scc1 L_exit0')
    iteration(a, 1, opts)
    a(f's_sub_u32 s{sLeft}, s{sLeft}, 1')
    a(f's_cmp_lg_u32 s{sLeft}, 0')
    a('s_cbranch_scc1 L_loop')
    a('s_nop 1')
    a(m2(1, 1))
    a('s_branch L_round_end')
    a.label('L_exit0')
    a('s_nop 1')
    a(m2(0, 1))
    a.label('L_round_end')
    a(f's_add_u32 s{sRound}, s{sRound}, 1')
    a(f's_cmp_lt_u32 s{sRound}, s{sRounds}')
    a('s_cbranch_scc1 L_next_round')

    stamp(14)
    a(f'v_add_u32 v{vT0}, s{sRo}, v{vC}')
    a(f'v_and_b32 v{vT0 + 1}, 15, v{vT0}')
    a(f's_lshl_b32 s11, s{sQ}, 2')
    a(f'v_xor_b32 v{vT0 + 1}, s11, v{vT0 + 1}')
    a(f'v_lshlrev_b32 v{vT0 + 1}, 4, v{vT0 + 1}')
    a(f'v_lshl_add_u32 v{vT0}, v{vT0}, 8, v{vT0 + 1}')
    a(f'v_lshl_add_u32 v{vT0}, v{vHH}, 3, v{vT0}')
    a(f'v_add_u32 v{vT0}, {L_XR}, v{vT0}')
    for i in range(4):
        a(f'v_xor_b32 v{vT0 + 1}, {i << 4}, v{vT0}')
        a(f'ds_read_b64 {V(EP + 2 * i, 2)}, v{vT0 + 1}')
    a(f'v_cmp_gt_u32 vcc, s{sNBN}, v{vC}')
    a(f'v_add_u32 v{vT0}, s{sNB0}, v{vC}')
    a(f'v_lshlrev_b32 v{vT0}, 8, v{vT0}')
    a(f'v_lshl_add_u32 v{vT0}, v{vHH}, 4, v{vT0}')
    a(f's_lshl_b32 s11, s{sQ}, 6')
    a(f'v_add_u32 v{vT0}, s11, v{vT0}')
    a(f'v_bfrev_b32 v{vT0 + 1}, 1')
    a(f'v_cndmask_b32 v{vT0}, v{vT0 + 1}, v{vT0}, vcc')
    a(f's_mov_b32 s12, 0x358637bd')
    a(f's_mov_b32 s13, 0x358637bd')
    for i in range(8):
        a(f'v_pk_add_f32 {V(DEN + 2 * i, 2)}, {V(DEN + 2 * i, 2)}, s[12:13]')
    for i in range(16):
        a(f'v_rcp_f32 v{DEN + i}, v{DEN + i}')
    for i in range(8):
        a(f'v_pk_fma_f32 {V(NUM + 2 * i, 2)}, {V(NUM + 2 * i, 2)}, {V(DEN + 2 * i, 2)}, {V(UU + 2 * i, 2)}')
    for i in range(16):
        a(f'v_max_f32 v{NUM + i}, 0, v{NUM + i}')
    a('s_waitcnt lgkmcnt(0)')
    for i in range(8):
        a(f'v_lshlrev_b32 v{DEN + 2 * i}, 16, v{EP + i}')
        a(f'v_and_b32 v{DEN + 2 * i + 1}, 0xffff0000, v{EP + i}')
    for i in range(8):
        a(f'v_pk_add_f32 {V(NUM + 2 * i, 2)}, {V(NUM + 2 * i, 2)}, {V(DEN + 2 * i, 2)}')
    for i in range(8):
        a(f'v_cvt_pk_bf16_f32 v{MP + i}, v{NUM + 2 * i}, v{NUM + 2 * i + 1}')
    for p in range(2):
        a(f'v_permlane32_swap_b32 v{MP + 4 * p}, v{MP + 4 * p + 2}')
        a(f'v_permlane32_swap_b32 v{MP + 4 * p + 1}, v{MP + 4 * p + 3}')
    for p in range(2):
        a(f'buffer_store_dwordx4 {V(MP + 4 * p, 4)}, v{vT0}, {S(sOut)}, 0 offen offset:{32 * p}')
    if stamps:
        a('s_waitcnt vmcnt(0)')
        stamp()
        a(f'v_writelane_b32 v{vStamp}, s{sTiles}, 15')
        srd(a, sPF, S_WS, 1 << 20, off=32 << 20)
        a(f's_lshl_b32 s11, s2, 3')
        a(f's_add_u32 s11, s11, s{sW}')
        a('s_lshl_b32 s11, s11, 6')
        a(f'v_lshl_add_u32 v{vT0}, v{vLane}, 2, s11')
        a(f'v_cmp_gt_u32 vcc, 16, v{vLane}')
        a('s_mov_b64 exec, vcc')
        a(f'buffer_store_dword v{vStamp}, v{vT0}, {S(sPF)}, 0 offen')
    a('s_endpgm')

    a.label('L_slow0')
    load_seg_ends(a)
    general_round(a, 's')
    a('s_branch L_placed0')

    a.label('L_next_round')
    a('s_waitcnt vmcnt(0) lgkmcnt(0)')
    a('s_barrier')
    dummy_fill(a)
    a(f'v_subrev_u32 v{kD0}, {CAP}, v{kD0}')
    a(f'v_subrev_u32 v{kD1}, {CAP}, v{kD1}')
    a(f'v_lshlrev_b32 v{vT0}, 5, v{vLane}')
    a(f's_lshl_b32 s11, s{sB4}, 2')
    a(f'v_add_u32 v{vT0}, s11, v{vT0}')
    a(f'ds_write_b32 v{vT0}, v{kD0} offset:{L_DELTA}')
    a(f'ds_write_b32 v{vT0}, v{kD1} offset:{L_DELTA + 16}')
    a('s_waitcnt lgkmcnt(0)')
    a('s_barrier')
    general_round(a, 'r')
    a('s_waitcnt lgkmcnt(0)')
    a('s_barrier')
    set_tiles(a)
    list_addrs(a)
    a('s_branch L_pipe')
    a.label('L_k2_exit')
    a('s_endpgm')
    return a
```

```python
from asm import Asm
from common import *

K1_BIN0, K1_T10, K1_FR0, K1_END = 0, 128, 384, 386
K1_LDS = 66048
K1_VGPR = 112

L_HIST = 0
L_EXC = 2048
L_FLAG = 4096
L_RECS = 4352
L_R2 = 9472
L_ES = 25856

STAMPS = 0
NT = ' nt'
XRD = XWR = 0


def st(a, i):
    if STAMPS:
        a('s_memrealtime s[70:71]')
        a('s_waitcnt lgkmcnt(0)')
        a(f'v_writelane_b32 v110, s70, {i}')


def k1_end(a):
    if STAMPS:
        a('s_mov_b64 exec, -1')
        st(a, 6)
        a('s_waitcnt vmcnt(0) lgkmcnt(0)')
        st(a, 7)
        a('v_writelane_b32 v110, s68, 0')
        srd(a, 72, S_WS, 1 << 20, off=33 << 20)
        a('s_lshl_b32 s11, s2, 3')
        a('s_add_u32 s11, s11, s3')
        a('s_lshl_b32 s11, s11, 5')
        a('v_lshl_add_u32 v4, v1, 2, s11')
        a('v_cmp_gt_u32 vcc, 8, v1')
        a('s_mov_b64 exec, vcc')
        a('buffer_store_dword v110, v4, s[72:75], 0 offen')
    a('s_endpgm')


def gen_bin(a):
    sDST, sSRC, sEA, sWS = 40, 44, 48, 52
    sC, sW = 2, 3
    vTid, vLane = 0, 1
    vI4, vI32 = 2, 3
    vD = [4, 5, 6]
    vS = [7, 8, 9]
    vE = [12, 20, 28]
    vB4 = [36, 37, 38]
    vRank = [39, 40, 41]
    vRec = [42, 43, 44]
    vT = [45, 46, 47, 48, 49]
    vOne = 50
    vPos = [54, 55, 56]
    vGx = [57, 58, 59]
    vCn = 60
    vEx = 68
    sMask2 = 64

    st(a, 1)
    srd(a, sDST, S_DST, E * 4)
    a(f's_mul_i32 s4, s{sC}, {CH}')
    a(f'v_add_u32 v{vI32}, s4, v{vTid}')
    a(f'v_lshlrev_b32 v{vI4}, 2, v{vI32}')
    a('s_movk_i32 s5, 4096')
    for r in range(3):
        if r < 2:
            a(f'buffer_load_dword v{vD[r]}, v{vI4}, {S(sDST)}, 0 offen offset:{2048 * r}')
        else:
            a(f'buffer_load_dword v{vD[r]}, v{vI4}, {S(sDST)}, s5 offen')
    srd(a, sSRC, S_SRC, E * 4)
    for r in range(3):
        if r < 2:
            a(f'buffer_load_dword v{vS[r]}, v{vI4}, {S(sSRC)}, 0 offen offset:{2048 * r}')
        else:
            a(f'buffer_load_dword v{vS[r]}, v{vI4}, {S(sSRC)}, s5 offen')
    a(f'v_lshlrev_b32 v{vT[0]}, 2, v{vTid}')
    a(f'v_mov_b32 v{vT[1]}, 0')
    a(f'ds_write_b32 v{vT[0]}, v{vT[1]} offset:{L_HIST}')
    a(f'ds_write_b32 v{vT[1]}, v{vT[1]} offset:{L_FLAG}')
    for i in range(4):
        a(f'v_mov_b32 v{vCn + i}, -1')
    a(f'v_lshlrev_b32 v{vT[2]}, 4, v{vTid}')
    a(f'ds_write_b128 v{vT[2]}, {V(vCn, 4)} offset:{L_R2}')
    a(f'ds_write_b128 v{vT[2]}, {V(vCn, 4)} offset:{L_R2 + 8192}')
    a(f'v_mov_b32 v{vOne}, 1')
    a(f'v_lshlrev_b32 v{vI32}, 5, v{vI32}')
    srd(a, sEA, S_EA, E * 32)
    srd(a, sWS, S_WS, WS_END)
    a(f's_movk_i32 s8, {CH - 1024}')
    a(f'v_cmp_gt_u32 {S(sMask2, 2)}, s8, v{vTid}')
    a(f's_mov_b32 s9, {BUCKET_MAGIC}')
    a('s_movk_i32 s10, 625')
    a('s_movk_i32 s6, 16384')
    a('s_mov_b32 s7, 32768')
    a('s_waitcnt lgkmcnt(0)')
    a('s_barrier')
    for r in range(3):
        a(f's_waitcnt vmcnt({5 - r})')
        a(f'v_mul_hi_u32 v{vRec[r]}, v{vD[r]}, s9')
        a(f'v_lshlrev_b32 v{vB4[r]}, 2, v{vRec[r]}')
        if r == 2:
            a(f's_mov_b64 exec, {S(sMask2, 2)}')
        a(f'ds_add_rtn_u32 v{vRank[r]}, v{vB4[r]}, v{vOne} offset:{L_HIST}')
        if r == 2:
            a('s_mov_b64 exec, -1')
    for r in range(3):
        so = ['0', 's6', 's7'][r]
        a(f'buffer_load_dwordx4 {V(vE[r], 4)}, v{vI32}, {S(sEA)}, {so} offen')
        a(f'buffer_load_dwordx4 {V(vE[r] + 4, 4)}, v{vI32}, {S(sEA)}, {so} offen offset:16')
    if XRD:
        srd(a, 56, S_WS, 8 << 20, off=64 << 20)
        for r in range(3):
            so = ['0', 's6', 's7'][r]
            a(f'buffer_load_dwordx4 {V(76 + 8 * r, 4)}, v{vI32}, s[56:59], {so} offen')
            a(f'buffer_load_dwordx4 {V(80 + 8 * r, 4)}, v{vI32}, s[56:59], {so} offen offset:16')
    for r in range(3):
        b = vRec[r]
        a(f'v_mad_u32_u24 v{vT[1]}, v{b}, s10, 31')
        a(f'v_lshrrev_b32 v{vT[1]}, 5, v{vT[1]}')
        a(f'v_sub_u32 v{vT[1]}, v{vD[r]}, v{vT[1]}')
        a(f'v_and_b32 v{vT[2]}, 0x13, v{vT[1]}')
        a(f'v_lshlrev_b32 v{vT[2]}, 1, v{vT[2]}')
        a(f'v_and_b32 v{vT[3]}, 4, v{vT[1]}')
        a(f'v_lshl_or_b32 v{vT[2]}, v{vT[3]}, 2, v{vT[2]}')
        a(f'v_and_or_b32 v{vT[2]}, v{vT[1]}, 8, v{vT[2]}')
        a(f'v_and_b32 v{b}, 3, v{b}')
        a(f'v_lshlrev_b32 v{b}, 22, v{b}')
        a(f'v_lshl_or_b32 v{b}, v{vT[2]}, 16, v{b}')
    for r in range(3):
        a(f's_waitcnt vmcnt({8 - r + 6 * XRD})')
        a(f'v_or_b32 v{vRec[r]}, v{vRec[r]}, v{vS[r]}')
    a('s_waitcnt lgkmcnt(0)')
    st(a, 2)
    a('s_barrier')
    a(f'v_lshlrev_b32 v{vT[0]}, 5, v{vLane}')
    a(f'ds_read_b128 {V(vCn, 4)}, v{vT[0]} offset:{L_HIST}')
    a(f'ds_read_b128 {V(vCn + 4, 4)}, v{vT[0]} offset:{L_HIST + 16}')
    a('s_waitcnt lgkmcnt(0)')
    a(f'v_add3_u32 v{vT[1]}, v{vCn}, v{vCn + 1}, v{vCn + 2}')
    a(f'v_add3_u32 v{vT[2]}, v{vCn + 3}, v{vCn + 4}, v{vCn + 5}')
    a(f'v_add3_u32 v{vT[1]}, v{vT[1]}, v{vCn + 6}, v{vCn + 7}')
    a(f'v_add_u32 v{vT[1]}, v{vT[1]}, v{vT[2]}')
    a(f'v_mov_b32 v{vT[2]}, v{vT[1]}')
    wave_scan_incl(a, vT[2])
    a(f'v_sub_u32 v{vEx}, v{vT[2]}, v{vT[1]}')
    for i in range(1, 8):
        a(f'v_add_u32 v{vEx + i}, v{vEx + i - 1}, v{vCn + i - 1}')
    a(f'ds_write_b128 v{vT[0]}, {V(vEx, 4)} offset:{L_EXC}')
    a(f'ds_write_b128 v{vT[0]}, {V(vEx + 4, 4)} offset:{L_EXC + 16}')
    for r in range(3):
        a(f'ds_read_b32 v{vPos[r]}, v{vB4[r]} offset:{L_EXC}')
        a(f'v_and_b32 v{vB4[r]}, -16, v{vB4[r]}')
        a(f'ds_read_b32 v{vGx[r]}, v{vB4[r]} offset:{L_EXC}')
    a(f's_lshl_b32 s11, s{sW}, 2')
    a(f'v_add_u32 v{vT[1]}, s11, v{vT[0]}')
    a(f'ds_read_b32 v{vT[2]}, v{vT[1]} offset:{L_EXC}')
    a(f'v_lshlrev_b32 v{vT[1]}, 6, v{vT[1]}')
    a(f's_lshl_b32 s12, s{sC}, 1')
    a(f's_add_u32 s12, s12, {WS_OFF}')
    st(a, 3)
    a('s_waitcnt vmcnt(0) lgkmcnt(0)')
    a(f'buffer_store_short v{vT[2]}, v{vT[1]}, {S(sWS)}, s12 offen')
    a('s_movk_i32 s13, 32')
    for r in range(3):
        a(f'v_add_u32 v{vPos[r]}, v{vPos[r]}, v{vRank[r]}')
        a(f'v_sub_u32 v{vGx[r]}, v{vPos[r]}, v{vGx[r]}')
        a(f'v_lshlrev_b32 v{vT[1]}, 2, v{vPos[r]}')
        a(f'v_lshlrev_b32 v{vT[2]}, 5, v{vPos[r]}')
        a(f'v_lshlrev_b32 v{vT[3]}, 3, v{vB4[r]}')
        a(f'v_lshl_add_u32 v{vT[3]}, v{vGx[r]}, 2, v{vT[3]}')
        a(f'v_cmp_gt_u32 vcc, s13, v{vGx[r]}')
        if r == 2:
            a(f's_mov_b64 exec, {S(sMask2, 2)}')
        a(f'ds_write_b32 v{vT[1]}, v{vRec[r]} offset:{L_RECS}')
        a(f'ds_write_b128 v{vT[2]}, {V(vE[r], 4)} offset:{L_ES}')
        a(f'ds_write_b128 v{vT[2]}, {V(vE[r] + 4, 4)} offset:{L_ES + 16}')
        a('s_and_b64 exec, exec, vcc')
        a(f'ds_write_b32 v{vT[3]}, v{vRec[r]} offset:{L_R2}')
        if r == 2:
            a(f's_andn2_b64 exec, {S(sMask2, 2)}, vcc')
        else:
            a('s_andn2_b64 exec, -1, vcc')
        a(f's_cbranch_execz L_bin_noovf{r}')
        a(f'v_mov_b32 v{vT[4]}, 0')
        a(f'ds_write_b32 v{vT[4]}, v{vOne} offset:{L_FLAG}')
        a.label(f'L_bin_noovf{r}')
        a('s_mov_b64 exec, -1')
    st(a, 4)
    a('s_waitcnt lgkmcnt(0)')
    a('s_barrier')
    st(a, 5)
    if XWR:
        srd(a, 56, S_WS, 16 << 20, off=96 << 20)
    a(f'v_lshlrev_b32 v{vT[0]}, 2, v{vTid}')
    a(f'v_lshlrev_b32 v{vT[1]}, 4, v{vTid}')
    for r in range(5):
        a(f'ds_read_b128 {V(12 + 4 * r, 4)}, v{vT[1]} offset:{L_ES + 8192 * r}')
    for r in range(2):
        a(f'ds_read_b128 {V(32 + 4 * r, 4)}, v{vT[1]} offset:{L_R2 + 8192 * r}')
    for r in range(3):
        a(f'ds_read_b32 v{vD[r]}, v{vT[0]} offset:{L_RECS + 2048 * r}')
    a(f'v_mov_b32 v{vT[4]}, 0')
    a(f'ds_read_b32 v{vT[4]}, v{vT[4]} offset:{L_FLAG}')
    a(f's_mul_i32 s14, s{sC}, {CH * 32}')
    a(f's_add_u32 s14, s14, {WS_ES}')
    a(f'v_add_u32 v{vT[2]}, s14, v{vT[1]}')
    a('s_movk_i32 s4, 8192')
    a('s_movk_i32 s14, 24576')
    a(f's_movk_i32 s8, {CH * 2 - 2048}')
    a(f'v_cmp_gt_u32 vcc, s8, v{vTid}')
    for r in range(5):
        so = ['0', 's4', 's6', 's14', 's7'][r]
        a(f's_waitcnt lgkmcnt({10 - r})')
        if r == 4:
            a('s_mov_b64 exec, vcc')
        a(f'buffer_store_dwordx4 {V(12 + 4 * r, 4)}, v{vT[2]}, {S(sWS)}, {so} offen{NT}')
        if XWR:
            a(f'buffer_store_dwordx4 {V(12 + 4 * r, 4)}, v{vT[2]}, s[56:59], {so} offen{NT}')
    a('s_mov_b64 exec, -1')
    a(f'v_lshrrev_b32 v{vT[2]}, 3, v{vTid}')
    a(f'v_lshlrev_b32 v{vT[2]}, 14, v{vT[2]}')
    a(f'v_and_b32 v{vT[3]}, 7, v{vTid}')
    a(f'v_lshl_add_u32 v{vT[2]}, v{vT[3]}, 4, v{vT[2]}')
    a(f's_lshl_b32 s11, s{sC}, 7')
    a(f's_add_u32 s11, s11, {WS_REC2}')
    a(f's_add_u32 s12, s11, {64 * 16384}')
    for r in range(2):
        a(f's_waitcnt lgkmcnt({5 - r})')
        a(f'buffer_store_dwordx4 {V(32 + 4 * r, 4)}, v{vT[2]}, {S(sWS)}, {"s11" if r == 0 else "s12"} offen{NT}')
    a(f's_mul_i32 s11, s{sC}, {CH * 4}')
    a(f's_add_u32 s11, s11, {WS_REC}')
    a('s_add_u32 s12, s11, 4096')
    for r in range(3):
        a(f's_waitcnt lgkmcnt({3 - r})')
        if r < 2:
            a(f'buffer_store_dword v{vD[r]}, v{vT[0]}, {S(sWS)}, s11 offen offset:{2048 * r}{NT}')
        else:
            a(f's_mov_b64 exec, {S(sMask2, 2)}')
            a(f'buffer_store_dword v{vD[r]}, v{vT[0]}, {S(sWS)}, s12 offen{NT}')
    a('s_mov_b64 exec, 3')
    a(f's_cmp_lg_u32 s{sW}, 0')
    a('s_cbranch_scc1 L_bin_done')
    a('s_waitcnt lgkmcnt(0)')
    a(f'v_mov_b32 v{vT[3]}, {CH}')
    a(f'v_cmp_eq_u32 vcc, 0, v{vLane}')
    a(f'v_cndmask_b32 v{vT[4]}, v{vT[4]}, v{vT[3]}, vcc')
    a(f'v_lshlrev_b32 v{vT[3]}, 8, v{vLane}')
    a(f's_lshl_b32 s12, s{sC}, 1')
    a(f's_add_u32 s12, s12, {WS_OFF + 512 * 256}')
    a(f'buffer_store_short v{vT[4]}, v{vT[3]}, {S(sWS)}, s12 offen')
    a.label('L_bin_done')
    k1_end(a)


def gen_t1(a):
    sX, sWB, sWV, sT = 40, 44, 48, 52
    sW, sG, sH, sN0, sNG = 3, 4, 5, 6, 7
    vTid, vLane = 0, 1
    vW = 8
    vXo = 40
    vAcc = 72
    vP = 88
    vT = [96, 97, 98, 99, 100, 101]
    vAW, vAX, vSt = 102, 103, 104
    vC, vHH = 105, 106

    st(a, 1)
    a(f's_sub_u32 s8, s2, {K1_T10}')
    wg_to_group(a, 8, sG, sH)
    srd(a, sWB, S_WB, 128 * 256)
    a(f's_cmp_ge_u32 s{sW}, 4')
    a(f's_cselect_b32 s{sWB}, s{S_WV}, s{S_WB}')
    a(f's_cselect_b32 s{sWB + 1}, s{S_WV + 1}, s{S_WB + 1}')
    a(f'v_lshrrev_b32 v{vT[0]}, 3, v{vLane}')
    a(f'v_and_b32 v{vT[1]}, 7, v{vLane}')
    a(f'v_lshrrev_b32 v{vT[2]}, 2, v{vLane}')
    a(f'v_and_b32 v{vT[2]}, 4, v{vT[2]}')
    a(f'v_xor_b32 v{vT[1]}, v{vT[1]}, v{vT[2]}')
    a(f'v_lshlrev_b32 v{vT[1]}, 4, v{vT[1]}')
    a(f'v_lshl_add_u32 v{vT[1]}, v{vT[0]}, 8, v{vT[1]}')
    a(f's_and_b32 s8, s{sW}, 3')
    a('s_lshl_b32 s9, s8, 13')
    a(f's_lshl_b32 s10, s{sH}, 7')
    a('s_add_u32 s9, s9, s10')
    a(f's_lshl_b32 s11, s{sW}, 12')
    for j in range(4):
        a(f's_add_u32 m0, s11, {j * 1024}')
        a(f's_add_u32 s12, s9, {j * 2048}')
        a(f'buffer_load_dwordx4 v{vT[1]}, {S(sWB)}, s12 offen lds')
    srd(a, sX, S_X, N * 256)
    a(f's_mul_i32 s{sN0}, s{sG}, 2500')
    a(f's_add_u32 s9, s{sN0}, 2531')
    a(f's_add_u32 s{sN0}, s{sN0}, 31')
    a(f's_lshr_b32 s{sN0}, s{sN0}, 5')
    a('s_lshr_b32 s9, s9, 5')
    a(f's_sub_u32 s{sNG}, s9, s{sN0}')
    a(f'v_lshrrev_b32 v{vT[0]}, 4, v{vLane}')
    a(f's_mul_i32 s12, s{sW}, 12')
    a(f'v_add_u32 v{vT[0]}, s12, v{vT[0]}')
    a(f'v_and_b32 v{vT[2]}, 15, v{vLane}')
    a(f's_mul_i32 s13, s{sW}, 3072')
    a(f's_add_u32 s13, s13, 32768')
    a(f's_lshl_b32 s14, s{sN0}, 8')
    for j in range(3):
        a(f'v_add_u32 v{vT[3]}, {4 * j}, v{vT[0]}')
        a(f'v_and_b32 v{vT[4]}, 15, v{vT[3]}')
        a(f'v_xor_b32 v{vT[4]}, v{vT[4]}, v{vT[2]}')
        a(f'v_lshlrev_b32 v{vT[3]}, 8, v{vT[3]}')
        a(f'v_lshl_add_u32 v{vT[3]}, v{vT[4]}, 4, v{vT[3]}')
        a(f's_add_u32 m0, s13, {j * 1024}')
        a('s_nop 0')
        a(f'buffer_load_dwordx4 v{vT[3]}, {S(sX)}, s14 offen lds')
    srd(a, sT, S_WS, 4 * TQ, off=WS_TBL)
    a('v_bfrev_b32 v107, 1')
    a(f'v_and_b32 v{vC}, 31, v{vLane}')
    a(f'v_lshrrev_b32 v{vHH}, 5, v{vLane}')
    a(f's_and_b32 s8, s{sW}, 1')
    a(f's_bfe_u32 s9, s{sW}, 0x10001')
    a(f'v_bfe_u32 v{vT[0]}, v{vLane}, 2, 2')
    a(f'v_lshl_add_u32 v{vT[1]}, v{vHH}, 3, v{vT[0]}')
    a(f'v_lshlrev_b32 v{vT[1]}, 7, v{vT[1]}')
    a(f'v_bfe_u32 v{vT[2]}, v{vLane}, 4, 1')
    a(f'v_lshlrev_b32 v{vT[2]}, 1, v{vT[2]}')
    a(f'v_bfe_u32 v{vT[3]}, v{vLane}, 1, 1')
    a(f'v_or_b32 v{vT[2]}, v{vT[2]}, v{vT[3]}')
    a('s_lshl_b32 s10, s9, 2')
    a(f'v_or_b32 v{vT[2]}, s10, v{vT[2]}')
    a(f'v_lshrrev_b32 v{vT[3]}, 1, v{vT[0]}')
    a(f'v_lshlrev_b32 v{vT[3]}, 2, v{vT[3]}')
    a(f'v_xor_b32 v{vT[2]}, v{vT[2]}, v{vT[3]}')
    a(f'v_lshl_add_u32 v{vT[1]}, v{vT[2]}, 4, v{vT[1]}')
    a(f'v_and_b32 v{vT[3]}, 1, v{vLane}')
    a(f'v_lshl_add_u32 v{vT[1]}, v{vT[3]}, 3, v{vT[1]}')
    a('s_lshl_b32 s10, s8, 14')
    a(f'v_add_u32 v{vAW}, s10, v{vT[1]}')
    a(f'v_and_b32 v{vT[0]}, 15, v{vC}')
    a(f'v_xor_b32 v{vT[0]}, v{vT[0]}, v{vHH}')
    a(f'v_lshlrev_b32 v{vT[0]}, 4, v{vT[0]}')
    a(f'v_lshl_add_u32 v{vT[0]}, v{vC}, 8, v{vT[0]}')
    a(f's_lshr_b32 s10, s{sW}, 2')
    a('s_lshl_b32 s14, s10, 6')
    a('s_lshl_b32 s10, s10, 14')
    a('s_add_u32 s10, s10, 32768')
    a(f'v_add_u32 v{vAX}, s10, v{vT[0]}')
    a(f's_lshl_b32 s10, s{sH}, 1')
    a('s_add_u32 s10, s10, s9')
    a(f's_mul_i32 s10, s10, {TQ}')
    a('s_lshl_b32 s11, s8, 6')
    a('s_add_u32 s10, s10, s11')
    a(f's_add_u32 s11, s{sN0}, s14')
    a('s_lshl_b32 s11, s11, 7')
    a('s_add_u32 s10, s10, s11')
    a(f'v_lshlrev_b32 v{vSt}, 7, v{vC}')
    a(f'v_lshl_add_u32 v{vSt}, v{vHH}, 4, v{vSt}')
    a(f'v_add_u32 v{vSt}, s10, v{vSt}')
    a('s_cmp_eq_u32 s8, 0')
    a(f's_cselect_b32 s15, {NEG_LOG2E:#x}, 1.0')
    st(a, 2)
    a('s_waitcnt vmcnt(0)')
    st(a, 3)
    a('s_barrier')
    st(a, 4)

    def tile(first, row_off, lds_off):
        for s in range(8):
            if first:
                a(f'ds_read_b64_tr_b16 {V(vW + 4 * s, 2)}, v{vAW} offset:{s * 2048}')
                a(f'ds_read_b64_tr_b16 {V(vW + 4 * s + 2, 2)}, v{vAW} offset:{s * 2048 + 512}')
            a(f'v_xor_b32 v{vT[0]}, {s << 5}, v{vAX}')
            a(f'ds_read_b128 {V(vXo + 4 * s, 4)}, v{vT[0]} offset:{lds_off}')
            n = 3 if first else 1
            if s >= 3:
                k = s - 3
                a(f's_waitcnt lgkmcnt({3 * n})')
                a(mfma(vAcc, vW + 4 * k, vXo + 4 * k, '0' if k == 0 else None))
        for k in range(5, 8):
            n = 3 if first else 1
            a(f's_waitcnt lgkmcnt({(7 - k) * n})')
            a(mfma(vAcc, vW + 4 * k, vXo + 4 * k))
        a(f'v_add_u32 v{vT[1]}, s14, v{vC}')
        if row_off:
            a(f'v_add_u32 v{vT[1]}, {row_off}, v{vT[1]}')
        a(f'v_cmp_gt_u32 vcc, s{sNG}, v{vT[1]}')
        a(f'v_add_u32 v{vT[2]}, {row_off * 128}, v{vSt}')
        a(f'v_cndmask_b32 v{vT[2]}, v107, v{vT[2]}, vcc')
        for i in range(16):
            a(f'v_mul_f32 v{vAcc + i}, s15, v{vAcc + i}')
        for i in range(8):
            a(f'v_cvt_pk_bf16_f32 v{vP + i}, v{vAcc + 2 * i}, v{vAcc + 2 * i + 1}')
        for p in range(2):
            a(f'v_permlane32_swap_b32 v{vP + 4 * p}, v{vP + 4 * p + 2}')
            a(f'v_permlane32_swap_b32 v{vP + 4 * p + 1}, v{vP + 4 * p + 3}')
        for p in range(2):
            a(f'buffer_store_dwordx4 {V(vP + 4 * p, 4)}, v{vT[2]}, {S(sT)}, 0 offen offset:{32 * p}{T1NT}')

    tile(True, 0, 0)
    st(a, 5)
    a(f's_cmp_ge_u32 s{sW}, 4')
    a('s_cbranch_scc1 L_t1_done')
    tile(False, 32, 8192)
    a.label('L_t1_done')
    k1_end(a)


T1NT = ''


def onehot_pairs(a, dst, base_vals, vt, hmul, vC, vHH, vOne16, vZero):
    a(f'v_mul_u32_u24 v{vt}, {hmul}, v{vHH}')
    a(f'v_sub_u32 v{vt}, v{vC}, v{vt}')
    for p, b in enumerate(base_vals):
        a(f'v_subrev_u32 v{vt + 1}, {b}, v{vt}')
        a(f'v_lshlrev_b32 v{vt + 2}, 4, v{vt + 1}')
        a(f'v_lshlrev_b32 v{vt + 2}, v{vt + 2}, v{vOne16}')
        a(f'v_cmp_gt_u32 vcc, 2, v{vt + 1}')
        a(f'v_cndmask_b32 v{dst + p}, v{vZero}, v{vt + 2}, vcc')


def gen_frag(a):
    sWm, sWC, sF = 40, 44, 48
    sW = 3
    vTid, vLane = 0, 1
    vT = [2, 3, 4, 5, 6, 7]
    vR = 8
    vA = 30
    a(f's_cmp_eq_u32 s2, {K1_FR0}')
    a(f's_cselect_b32 s{sWm}, s{S_WA}, s{S_WU}')
    a(f's_cselect_b32 s{sWm + 1}, s{S_WA + 1}, s{S_WU + 1}')
    a(f's_mov_b32 s{sWm + 2}, {128 * 256}')
    a(f's_mov_b32 s{sWm + 3}, {SRD3:#x}')
    srd(a, sWC, S_WC, 16 * 256)
    srd(a, sF, S_WS, WS_END - WS_FR, off=WS_FR)
    a(f'v_lshrrev_b32 v{vT[0]}, 4, v{vLane}')
    a(f'v_and_b32 v{vT[1]}, 15, v{vLane}')
    a(f'v_lshlrev_b32 v{vT[2]}, 2, v{vT[0]}')
    a(f'v_xor_b32 v{vT[1]}, v{vT[1]}, v{vT[2]}')
    a(f'v_lshlrev_b32 v{vT[1]}, 4, v{vT[1]}')
    a(f'v_lshl_add_u32 v{vT[1]}, v{vT[0]}, 8, v{vT[1]}')
    a(f's_lshl_b32 s8, s{sW}, 12')
    for j in range(4):
        a(f's_add_u32 m0, s8, {j * 1024}')
        a(f's_add_u32 s9, s8, {j * 1024}')
        a(f'buffer_load_dwordx4 v{vT[1]}, {S(sWm)}, s9 offen lds')
    a(f's_and_b32 s10, s{sW}, 3')
    a('s_lshl_b32 s9, s10, 10')
    a('s_add_u32 m0, s9, 32768')
    a('s_nop 0')
    a(f'buffer_load_dwordx4 v{vT[1]}, {S(sWC)}, s9 offen lds')
    a(f'v_lshrrev_b32 v{vT[0]}, 5, v{vLane}')
    a(f'v_bfe_u32 v{vT[2]}, v{vLane}, 2, 2')
    a(f'v_lshl_add_u32 v{vT[3]}, v{vT[0]}, 3, v{vT[2]}')
    a(f'v_lshlrev_b32 v{vT[3]}, 8, v{vT[3]}')
    a(f'v_bfe_u32 v{vT[4]}, v{vLane}, 4, 1')
    a(f'v_lshlrev_b32 v{vT[4]}, 1, v{vT[4]}')
    a(f'v_bfe_u32 v{vT[5]}, v{vLane}, 1, 1')
    a(f'v_or_b32 v{vT[4]}, v{vT[4]}, v{vT[5]}')
    a('s_lshl_b32 s11, s10, 2')
    a(f'v_or_b32 v{vT[4]}, s11, v{vT[4]}')
    a(f'v_lshlrev_b32 v{vT[2]}, 2, v{vT[2]}')
    a(f'v_xor_b32 v{vT[4]}, v{vT[4]}, v{vT[2]}')
    a(f'v_lshl_add_u32 v{vT[3]}, v{vT[4]}, 4, v{vT[3]}')
    a(f'v_and_b32 v{vT[5]}, 1, v{vLane}')
    a(f'v_lshl_add_u32 v{vT[3]}, v{vT[5]}, 3, v{vT[3]}')
    a(f's_lshr_b32 s11, s{sW}, 2')
    a('s_lshl_b32 s12, s11, 14')
    a(f'v_add_u32 v{vA}, s12, v{vT[3]}')
    a(f's_cmp_eq_u32 s2, {K1_FR0}')
    a('s_cselect_b32 s12, 0, 8192')
    a(f's_mul_i32 s13, s10, {FRQ}')
    a('s_add_u32 s12, s12, s13')
    a('s_lshl_b32 s14, s11, 12')
    a('s_add_u32 s12, s12, s14')
    a(f'v_lshlrev_b32 v{vT[0]}, 4, v{vLane}')
    a(f'v_add_u32 v{vT[1]}, s12, v{vT[0]}')
    a('s_waitcnt vmcnt(0)')
    a('s_barrier')
    for s in range(4):
        a(f'ds_read_b64_tr_b16 {V(vR + 4 * s, 2)}, v{vA} offset:{s * 4096}')
        a(f'ds_read_b64_tr_b16 {V(vR + 4 * s + 2, 2)}, v{vA} offset:{s * 4096 + 1024}')
    a(f'ds_read_b64_tr_b16 {V(24, 2)}, v{vT[3]} offset:32768')
    a(f'ds_read_b64_tr_b16 {V(26, 2)}, v{vT[3]} offset:{32768 + 1024}')
    a('s_waitcnt lgkmcnt(0)')

    def scale4(r):
        for i in range(4):
            a(f'v_lshlrev_b32 v{32 + 2 * i}, 16, v{r + i}')
            a(f'v_and_b32 v{33 + 2 * i}, 0xffff0000, v{r + i}')
        for i in range(8):
            a(f'v_mul_f32 v{32 + i}, s12, v{32 + i}')
        for i in range(4):
            a(f'v_cvt_pk_bf16_f32 v{r + i}, v{32 + 2 * i}, v{33 + 2 * i}')

    a(f's_cmp_eq_u32 s2, {K1_FR0}')
    a('s_cbranch_scc0 L_fr_u')
    a(f's_mov_b32 s12, {NEG_LOG2E:#x}')
    for s in range(4):
        scale4(vR + 4 * s)
        a(f'buffer_store_dwordx4 {V(vR + 4 * s, 4)}, v{vT[1]}, {S(sF)}, 0 offen offset:{s * 1024}')
    a(f's_cmp_ge_u32 s{sW}, 4')
    a('s_cbranch_scc1 L_fr_done')
    scale4(24)
    a('s_add_u32 s13, s13, 16384')
    a(f'v_add_u32 v{vT[0]}, s13, v{vT[0]}')
    a(f'buffer_store_dwordx4 {V(24, 4)}, v{vT[0]}, {S(sF)}, 0 offen')
    a('s_branch L_fr_done')
    a.label('L_fr_u')
    for s in range(4):
        a(f'buffer_store_dwordx4 {V(vR + 4 * s, 4)}, v{vT[1]}, {S(sF)}, 0 offen offset:{s * 1024}')
    a(f's_cmp_lg_u32 s{sW}, 0')
    a('s_cbranch_scc1 L_fr_done')
    C = 48
    vC, vHH, vOne16, vZero, t = 40, 41, 42, 43, 44
    a(f'v_and_b32 v{vC}, 31, v{vLane}')
    a(f'v_lshrrev_b32 v{vHH}, 5, v{vLane}')
    a(f'v_mov_b32 v{vZero}, 0')
    a(f'v_mov_b32 v{vOne16}, 0x3f80')
    onehot_pairs(a, C, [0, 2, 8, 10], t, 4, vC, vHH, vOne16, vZero)
    onehot_pairs(a, C + 4, [16, 18, 24, 26], t, 4, vC, vHH, vOne16, vZero)
    r_, g2, c1, c0, row4, u = 60, 61, 62, 63, 64, 65
    a(f'v_bfe_u32 v{r_}, v{vLane}, 2, 2')
    a(f'v_bfe_u32 v{g2}, v{vLane}, 4, 1')
    a(f'v_bfe_u32 v{c1}, v{vLane}, 1, 1')
    a(f'v_and_b32 v{c0}, 1, v{vLane}')
    a(f'v_lshl_add_u32 v{row4}, v{vHH}, 2, v{r_}')
    a(f'v_lshl_or_b32 v{u}, v{g2}, 1, v{c1}')
    a(f'v_lshrrev_b32 v{t}, 1, v{r_}')
    a(f'v_lshlrev_b32 v{t}, 2, v{t}')
    a(f'v_xor_b32 v{t}, v{t}, v{u}')
    a(f'v_lshlrev_b32 v{t}, 4, v{t}')
    a(f'v_lshl_add_u32 v{t}, v{row4}, 7, v{t}')
    a(f'v_lshl_add_u32 v{C + 8}, v{c0}, 3, v{t}')
    a(f'v_lshl_or_b32 v{u}, v{g2}, 1, v{c0}')
    a(f'v_xor_b32 v{t}, v{u}, v{vHH}')
    a(f'v_lshlrev_b32 v{t}, 4, v{t}')
    a(f'v_lshl_add_u32 v{t}, v{row4}, 6, v{t}')
    a(f'v_lshl_add_u32 v{C + 9}, v{c1}, 3, v{t}')
    a(f'v_bfe_u32 v{t}, v{vC}, 2, 2')
    a(f'v_xor_b32 v{t}, v{t}, v{vHH}')
    a(f'v_lshlrev_b32 v{t}, 4, v{t}')
    a(f'v_lshl_add_u32 v{C + 10}, v{vC}, 6, v{t}')
    a(f'v_lshlrev_b32 v{t}, 2, v{g2}')
    a(f'v_and_b32 v{u}, 7, v{vLane}')
    a(f'v_xor_b32 v{t}, v{t}, v{u}')
    a(f'v_lshlrev_b32 v{C + 11}, 4, v{t}')
    a(f'v_lshlrev_b32 v{t}, 4, v{vLane}')
    a(f'v_add_u32 v{t}, {WS_CONST - WS_FR}, v{t}')
    for k in range(3):
        a(f'buffer_store_dwordx4 {V(C + 4 * k, 4)}, v{t}, {S(sF)}, 0 offen offset:{k * 1024}')
    a.label('L_fr_done')
    k1_end(a)


def gen_k1(opts=None):
    opts = opts or {}
    a = Asm()
    global STAMPS, NT, T1NT, XRD, XWR
    XRD = int(opts.get('xrd', 0))
    XWR = int(opts.get('xwr', 0))
    STAMPS = int(opts.get('stamps', 0))
    FL = {'0': '', '1': ' nt', 'sc1': ' sc1', 'sc01': ' sc0 sc1', 'sc1nt': ' sc1 nt'}
    NT = FL[opts.get('nt', '0')]
    T1NT = FL[opts.get('t1nt', '0')]
    a(f's_cmp_ge_u32 s2, {K1_END}')
    a('s_cbranch_scc1 L_k1_exit')
    if STAMPS:
        a('s_memrealtime s[68:69]')
    load_kernargs(a)
    a('v_and_b32 v1, 63, v0')
    a('v_lshrrev_b32 v2, 6, v0')
    a('v_readfirstlane_b32 s3, v2')
    a('s_waitcnt lgkmcnt(0)')
    shift_ws(a, opts)
    a(f's_cmp_ge_u32 s2, {K1_FR0}')
    a('s_cbranch_scc1 L_k1_frag')
    a(f's_cmp_ge_u32 s2, {K1_T10}')
    a('s_cbranch_scc1 L_k1_t1')
    gen_bin(a)
    a.label('L_k1_t1')
    gen_t1(a)
    a.label('L_k1_frag')
    gen_frag(a)
    a.label('L_k1_exit')
    a('s_endpgm')
    return a
```

```python
from asm import Asm
from common import *
from k1 import onehot_pairs

K2_GRID = 256
CAP = 416

LS = 576
L_EIDX = 0
L_SRC = 4 * LS * 4
L_OAD = L_SRC + 4 * LS * 2
L_DELTA = L_OAD + 4 * LS * 2
L_CNT = L_DELTA + 2048
L_O = L_CNT + 256
O_STRIDE = 2048
L_RING = L_O + 8 * O_STRIDE
L_FR = L_RING + 65536
L_XR = L_FR + 2 * FRQ
K2_LDS = L_XR + 96 * 256
assert K2_LDS <= 163840 and L_O % 256 == 0 and L_RING % 256 == 0 and L_XR % 256 == 0
DUMMY_POS2 = 62

sW, sG, sH, sB4, sQ, sB, sNB0, sNBN = 3, 4, 5, 6, 7, 8, 9, 10
sX, sT, sE, sWS, sOut = 40, 44, 48, 52, 56
sTiles, sCnt, sRound, sRounds, sRing, sOb, sXr, sLeft = 60, 61, 62, 63, 64, 65, 66, 67
sM512, sCAP, sRo, sFr, sSlow = 68, 69, 70, 71, 72
sPF = 76

vLane, vC, vHH = 1, 2, 3
vASrc, vAEi, vAOd = 4, 5, 6
vO0a, vO1a, vOTa, vOTb, vRB, vRH = 7, 8, 9, 10, 11, 12
vOne16, vZero = 13, 14
vOA = [15, 16]
vT0 = 17
vEI = 20
vIx = 22
vPF = 30
DEN, NUM = 32, 48
G = [64, 80]
H = [96, 112]
EP, MP = 128, 136
AP, WC = 144, 152
I0, I1 = 156, 160
BP, HP, OO = 164, 172, 180
SS = [188, 196]
EE = [204, 208, 244]
UU = 212
vRB2, vRH2 = 248, 249
vKeep = list(range(228, 242))
K2_VGPR = 250
kS = vKeep[0:4]
kEnd = vKeep[4:8]
kD0, kD1, kCb, kDc = vKeep[8:12]
vOcX, vOcC = vKeep[12:14]
vStamp = 242
vRec = [G[0] + i for i in range(8)]
vEi = [G[0] + 8 + i for i in range(8)]
vDl = [BP + i for i in range(8)]
vB4r = [HP + i for i in range(8)]
vP = [SS[0] + i for i in range(4)]
vL15 = SS[0] + 4
vOFF = OO
CONST = SS[1]


def identity_operands(a):
    t = vT0
    a(f'v_lshlrev_b32 v{t}, 2, v{vHH}')
    a(f'v_sub_u32 v{t}, v{vC}, v{t}')
    a(f'v_and_b32 v{t + 1}, 1, v{t}')
    a(f'v_lshlrev_b32 v{t + 1}, 4, v{t + 1}')
    a(f'v_lshlrev_b32 v{t + 1}, v{t + 1}, v{vOne16}')
    a(f'v_ashrrev_i32 v{t}, 1, v{t}')
    pairs = [0, 1, 4, 5, 8, 9, 12, 13]
    for i, pr in enumerate(pairs):
        a(f'v_cmp_eq_u32 s[{88 + 2 * (i & 3)}:{89 + 2 * (i & 3)}], {pr}, v{t}')
        if (i & 3) == 3:
            for j in range(i - 3, i + 1):
                a(f'v_cndmask_b32 v{I0 + j}, v{vZero}, v{t + 1}, s[{88 + 2 * (j & 3)}:{89 + 2 * (j & 3)}]')


def dummy_fill(a):
    a(f'v_lshlrev_b32 v{vT0}, 4, v0')
    for i in range(4):
        a(f'v_mov_b32 v{BP + i}, -1')
    a(f'ds_write_b128 v{vT0}, {V(BP, 4)} offset:{L_EIDX}')
    a(f'v_lshlrev_b32 v{vT0 + 1}, 3, v0')
    a(f'ds_write_b64 v{vT0 + 1}, {V(BP, 2)} offset:{L_SRC}')
    a(f'v_mov_b32 v{BP + 4}, {DUMMY_POS2 | DUMMY_POS2 << 16:#x}')
    a(f'v_mov_b32 v{BP + 5}, {DUMMY_POS2 | DUMMY_POS2 << 16:#x}')
    a(f'ds_write_b64 v{vT0 + 1}, {V(BP + 4, 2)} offset:{L_OAD}')
    a(f'v_lshlrev_b32 v{vT0}, 4, v{vLane}')
    a(f'ds_write_b128 v{vT0}, {V(BP, 4)} offset:{L_EIDX + 8192}')
    a(f'v_lshlrev_b32 v{vT0 + 1}, 3, v{vLane}')
    a(f'ds_write_b64 v{vT0 + 1}, {V(BP, 2)} offset:{L_SRC + 4096}')
    a(f'ds_write_b64 v{vT0 + 1}, {V(BP + 4, 2)} offset:{L_OAD + 4096}')


def issue_rec_loads(a):
    for u in range(2):
        for k in range(4):
            i = 4 * u + k
            if u:
                a(f'v_add_u32 v{vT0}, 16, v{vP[k]}')
                src = vT0
            else:
                src = vP[k]
            a(f'v_cmp_lt_u32 vcc, v{src}, v{kEnd[k]}')
            a(f'v_add_u32 v{vEi[i]}, v{src}, v{kCb}')
            if k:
                a(f'v_add_u32 v{vEi[i]}, {k * 4 * CH}, v{vEi[i]}')
            a(f'v_cndmask_b32 v{vEi[i]}, v{vL15 + 1}, v{vEi[i]}, vcc')
            a(f'v_lshlrev_b32 v{vT0 + 1}, 2, v{vEi[i]}')
            a(f'buffer_load_dword v{vRec[i]}, v{vT0 + 1}, {S(sWS)}, s15 offen')


HACK = ''


def list_writes(a, i, lp):
    if 's' in HACK:
        a(f'v_and_b32 v{vRec[i]}, 0xffff003f, v{vRec[i]}')
    if 'e' in HACK:
        a(f'v_and_b32 v{vEi[i]}, 255, v{vEi[i]}')
    a(f'v_lshlrev_b32 v{vT0}, 2, v{lp}')
    a(f'v_lshlrev_b32 v{vT0 + 1}, 1, v{lp}')
    a('s_mov_b64 exec, vcc')
    a(f'ds_write_b32 v{vT0}, v{vEi[i]} offset:{L_EIDX}')
    a(f'ds_write_b16 v{vT0 + 1}, v{vRec[i]} offset:{L_SRC}')
    a(f'ds_write_b16_d16_hi v{vT0 + 1}, v{vRec[i]} offset:{L_OAD}')
    a('s_mov_b64 exec, -1')


def delta_reads(a):
    for i in range(8):
        k = i & 3
        a(f'v_bfe_u32 v{vB4r[i]}, v{vRec[i]}, 22, 2')
        a(f'v_lshl_add_u32 v{vT0}, v{vB4r[i]}, 2, v{kDc}')
        a(f'ds_read_b32 v{vDl[i]}, v{vT0} offset:{L_DELTA + 64 * k}')


def placement_general(a, tag):
    a('s_waitcnt vmcnt(0)')
    delta_reads(a)
    a('s_waitcnt lgkmcnt(0)')
    for i in range(8):
        k = i & 3
        lp = vDl[i]
        a(f'v_sub_u32 v{vT0}, v{vEi[i]}, v{kCb}')
        if k:
            a(f'v_subrev_u32 v{vT0}, {k * 4 * CH}, v{vT0}')
        a(f'v_sub_u32 v{vT0}, v{vT0}, v{kS[k]}')
        a(f'v_add_u32 v{lp}, v{vT0}, v{lp}')
        a(f'v_mad_i32_i24 v{vT0}, v{vB4r[i]}, s{sM512}, v{lp}')
        a(f'v_cmp_gt_u32 vcc, s{sCAP}, v{vT0}')
        a(f's_cbranch_vccz L_pl_{tag}_{i}')
        list_writes(a, i, lp)
        a.label(f'L_pl_{tag}_{i}')


def placement_fast(a):
    delta_reads(a)
    a('s_waitcnt lgkmcnt(0)')
    for i in range(8):
        lp = vDl[i]
        a(f'v_cmp_ne_u32 vcc, -1, v{vRec[i]}')
        if i >= 4:
            a(f's_cbranch_vccz L_plf_{i}')
        if i < 4:
            a(f'v_add_u32 v{lp}, v{vL15}, v{lp}')
        else:
            a(f'v_add3_u32 v{lp}, v{vL15}, v{lp}, 16')
        list_writes(a, i, lp)
        if i >= 4:
            a.label(f'L_plf_{i}')


def general_round(a, tag):
    a(f'v_and_b32 v{vL15}, 15, v{vLane}')
    a(f'v_mov_b32 v{vL15 + 1}, 0x20000000')
    a(f's_mov_b32 s15, {WS_REC}')
    for k in range(4):
        a(f'v_add_u32 v{vP[k]}, v{kS[k]}, v{vL15}')
    a.label(f'L_more_{tag}')
    issue_rec_loads(a)
    placement_general(a, tag)
    for k in range(4):
        a(f'v_add_u32 v{vP[k]}, 32, v{vP[k]}')
    a(f'v_cmp_lt_u32 s[12:13], v{vP[0]}, v{kEnd[0]}')
    for k in range(1, 4):
        a(f'v_cmp_lt_u32 vcc, v{vP[k]}, v{kEnd[k]}')
        a('s_or_b64 s[12:13], s[12:13], vcc')
    a('s_cmp_lg_u64 s[12:13], 0')
    a(f's_cbranch_scc1 L_more_{tag}')


def load_seg_ends(a):
    a(f'v_lshrrev_b32 v{vT0}, 3, v{kDc}')
    a(f's_lshl_b32 s11, s{sG}, 10')
    a(f's_add_u32 s11, s11, {WS_OFF + 1024}')
    for k in range(4):
        a(f'buffer_load_ushort v{kEnd[k]}, v{vT0}, {S(sWS)}, s11 offen offset:{8 * k}')
    a('s_waitcnt vmcnt(0)')


def set_tiles(a):
    a(f's_mul_i32 s11, s{sRound}, {CAP}')
    a(f's_sub_i32 s11, s{sCnt}, s11')
    a('s_max_i32 s11, s11, 0')
    a(f's_min_i32 s11, s11, {CAP}')
    a('s_add_u32 s11, s11, 31')
    a(f's_lshr_b32 s{sTiles}, s11, 5')


def list_addrs(a):
    a(f's_mul_i32 s11, s{sB4}, {LS}')
    a(f'v_lshrrev_b32 v{vT0}, 3, v{vLane}')
    a(f'v_add_lshl_u32 v{vASrc}, v{vT0}, s11, 1')
    a(f'v_add_lshl_u32 v{vAEi}, v{vC}, s11, 2')
    a(f'v_lshrrev_b32 v{vAOd}, 1, v{vAEi}')


def idx_reads(a, tile_off):
    for j in range(4):
        a(f'ds_read_u16 v{vIx + 2 * j}, v{vASrc} offset:{L_SRC + tile_off * 64 + j * 16}')
    a(f'ds_read_b32 v{vEI}, v{vAEi} offset:{L_EIDX + tile_off * 128}')


def oad_read(a, dst, tile_off):
    a(f'ds_read_u16 v{dst}, v{vAOd} offset:{L_OAD + tile_off * 64}')


def oad_fix(r):
    return [f'v_bitop3_b32 v{r}, v{r}, v{vOcX}, 62 bitop3:0x28', f'v_add_u32 v{r}, v{vOcC}, v{r}']


def dma(slot, esel):
    out = []
    for j in range(4):
        out.append(f's_add_u32 m0, s{sRing}, {slot * 32768 + j * 1024}')
        out.append(f'buffer_load_dwordx4 {V(vIx + 2 * j, 2)}, {S(sT)}, 0 idxen offen lds')
    out.append(f'buffer_load_dwordx4 {V(EE[esel], 4)}, {V(vEI, 2)}, {S(sE)}, 0 idxen offen')
    return out


def operand_reads(slot, sp, oa):
    o = [f'ds_write_b16 v{oa}, v{vOne16}']
    o += [f'ds_read_b128 {V(OO, 4)}, v{vO0a}', f'ds_read_b128 {V(OO + 4, 4)}, v{vO1a}']
    rb, rh, so = (vRB2, vRH2, 0) if slot == 2 else (vRB, vRH, slot * 32768)
    o += [f'ds_read_b64_tr_b16 {V(BP + 2 * i, 2)}, v{rb} offset:{so + i * 1024}' for i in range(4)]
    o += [f'ds_read_b64_tr_b16 {V(HP + 2 * i, 2)}, v{rh} offset:{so + i * 1024}' for i in range(4)]
    o += [f'ds_read_b64_tr_b16 {V(SS[sp] + 2 * i, 2)}, v{vOTb if i & 1 else vOTa} offset:{i * 512}' for i in range(4)]
    o += [f'ds_write_b16 v{oa}, v{vZero}']
    return o


def m1(p, e):
    return [(None, mfma(G[p], EE[e], WC, '0')),
            ('lgkmcnt(13)', mfma(G[p], OO, AP)),
            (None, mfma(G[p], OO + 4, AP + 4)),
            ('lgkmcnt(9)', mfma(G[p], I0, BP)),
            (None, mfma(G[p], I1, BP + 4)),
            ('lgkmcnt(5)', mfma(H[p], I0, HP, '0')),
            (None, mfma(H[p], I1, HP + 4))]


def valu_tile(p):
    g, h = G[p], H[p]
    out = []
    for half in range(2):
        r = range(8 * half, 8 * half + 8)
        out += [f'v_exp_f32 v{g + i}, v{g + i}' for i in r]
        out += [f'v_add_f32 v{g + i}, 1.0, v{g + i}' for i in r]
        out += [f'v_rcp_f32 v{g + i}, v{g + i}' for i in r]
        out += [f'v_mul_f32 v{h + i}, v{g + i}, v{h + i}' for i in r]
        out += [f'v_cvt_pk_bf16_f32 v{EP + i // 2}, v{g + i}, v{g + i + 1}' for i in r if i % 2 == 0]
        out += [f'v_cvt_pk_bf16_f32 v{MP + i // 2}, v{h + i}, v{h + i + 1}' for i in r if i % 2 == 0]
    return out


def m2(sp, half):
    o = 4 * half
    return [mfma(DEN, EP + o, SS[sp] + o), mfma(NUM, MP + o, SS[sp] + o)]


def valu_blocks(p):
    g, h = G[p], H[p]
    r = range(16)
    return [[f'v_exp_f32 v{g + i}, v{g + i}' for i in r],
            [f'v_add_f32 v{g + i}, 1.0, v{g + i}' for i in r],
            [f'v_rcp_f32 v{g + i}, v{g + i}' for i in r],
            [f'v_mul_f32 v{h + i}, v{g + i}, v{h + i}' for i in r],
            [x for i in range(0, 16, 2) for x in (f'v_cvt_pk_bf16_f32 v{EP + i // 2}, v{g + i}, v{g + i + 1}',
                                                   f'v_cvt_pk_bf16_f32 v{MP + i // 2}, v{h + i}, v{h + i + 1}')]]


def iteration(a, n, opts, first=False):
    sched = opts.get('sched', 'A')
    if sched == 'A':
        return iteration_a(a, n, opts, first)
    return iteration_b(a, n, opts, first)


def iteration_b(a, n, opts, first=False):
    p, sl = n & 1, n % 3
    q = 1 - p
    prio = int(opts.get('prio', 1))
    grp = opts.get('grp', '1')
    B = valu_blocks(p)
    V_ = [x for b in B for x in b]
    ins = {i: [] for i in range(-1, 81)}
    lead = ['s_waitcnt lgkmcnt(0)'] + oad_fix(vOA[q])
    d = dma(2, 2) if first else dma(sl, sl)
    tmp = Asm()
    idx_reads(tmp, n + 3 if first else n + 4)
    oad_read(tmp, vOA[p], n + 2)
    idx = [i.text for i in tmp.ins]
    rd = operand_reads((n + 1) % 3, q, vOA[q])
    seg = m2(q, 0) + m2(q, 1)
    wv = f's_waitcnt vmcnt({5 if first else 10})'
    if grp == '1':
        ins[0] += lead + d + idx + [wv] + rd[0:11]
        for k, s_ in enumerate((0, 3, 6, 9)):
            ins[s_].append(seg[k])
        ins[13] += rd[11:16]
        mm = m1(q, (n + 1) % 3)
        waits = [None, 'lgkmcnt(13)', None, 'lgkmcnt(9)', None, 'lgkmcnt(5)', None]
        pos = [12, 33, 37, 41, 45, 66, 72]
        waits = [None, 'lgkmcnt(13)', None, 'lgkmcnt(9)', None, 'lgkmcnt(5)', None]
    else:
        ins[0] += lead + d[0:4]
        ins[1] += d[4:9]
        ins[2] += idx[0:3]
        ins[3] += idx[3:6]
        ins[5] += [wv] + rd[0:3]
        ins[6] += rd[3:5]
        ins[7] += rd[5:7]
        ins[8] += rd[7:9]
        ins[9] += rd[9:11]
        for k, s_ in enumerate((1, 4, 8, 12)):
            ins[s_].append(seg[k])
        ins[14] += rd[11:13]
        ins[15] += rd[13:16]
        mm = m1(q, (n + 1) % 3)
        pos = [15, 33, 37, 41, 45, 66, 72]
        waits = [None, 'lgkmcnt(13)', None, 'lgkmcnt(9)', None, 'lgkmcnt(5)', None]
    for (w, m), w2, s_ in zip(mm, waits, pos):
        if w2:
            ins[s_].append(f's_waitcnt {w2}')
        ins[s_].append(m)
    if first:
        d = dma(0, 0)
        ins[66] += d[0:4]
        ins[68] += d[4:9]
        tmp = Asm()
        idx_reads(tmp, n + 4)
        idx = [i.text for i in tmp.ins]
        ins[75] += idx[0:3]
        ins[76] += idx[3:5]
    for i in range(80):
        if prio and i in (0, 32, 64):
            a('s_setprio 1')
        if prio and i in (16, 48):
            a('s_setprio 0')
        a(ins[i])
        a(V_[i])
    if n == 6:
        a(f'v_add_u32 v{vASrc}, {6 * 64}, v{vASrc}')
        a(f'v_add_u32 v{vAEi}, {6 * 128}, v{vAEi}')
        a(f'v_add_u32 v{vAOd}, {6 * 64}, v{vAOd}')


def iteration_a(a, n, opts, first=False):
    p, sl = n & 1, n % 3
    q = 1 - p
    V_ = valu_tile(p)
    ins = {i: [] for i in range(-1, 81)}
    lead = ['s_waitcnt lgkmcnt(0)'] + oad_fix(vOA[q])
    d = dma(2, 2) if first else dma(sl, sl)
    m2b = m2(q, 1)
    ins[0] += lead + d[0:2]
    ins[1] += d[2:4] + [m2b[0]]
    ins[2] += d[4:6]
    ins[3] += d[6:9]
    tmp = Asm()
    idx_reads(tmp, n + 3 if first else n + 4)
    oad_read(tmp, vOA[p], n + 2)
    idx = [i.text for i in tmp.ins]
    ins[4] += idx[0:2]
    ins[5] += idx[2:4] + [m2b[1]]
    ins[6] += idx[4:6]
    rd = operand_reads((n + 1) % 3, q, vOA[q])
    ins[8] += [f's_waitcnt vmcnt({5 if first else 10})'] + rd[0:3]
    ins[10] += rd[3:5]
    ins[11] += rd[5:7]
    ins[12] += rd[7:9]
    ins[13] += rd[9:11]
    ins[14] += rd[11:13]
    ins[15] += rd[13:16]
    mm = m1(q, (n + 1) % 3)
    pos = [17, 24, 30, 50, 56, 62, 68]
    for (w, m), s in zip(mm, pos):
        if w:
            ins[s].append(f's_waitcnt {w}')
        ins[s].append(m)
    m2a = m2(p, 0)
    ins[42] += [m2a[0]]
    ins[46] += [m2a[1]]
    if first:
        d = dma(0, 0)
        ins[70] += d[0:2]
        ins[71] += d[2:4]
        ins[72] += d[4:6]
        ins[73] += d[6:9]
        tmp = Asm()
        idx_reads(tmp, n + 4)
        idx = [i.text for i in tmp.ins]
        ins[75] += idx[0:3]
        ins[76] += idx[3:5]
    prio = int(opts.get('prio', 0))
    for i in range(80):
        if prio and i % 40 in (0, 16, 32):
            a('s_setprio 1')
        if prio and i % 40 in (8, 24):
            a('s_setprio 0')
        a(ins[i])
        a(V_[i])
    if n == 6:
        a(f'v_add_u32 v{vASrc}, {6 * 64}, v{vASrc}')
        a(f'v_add_u32 v{vAEi}, {6 * 128}, v{vAEi}')
        a(f'v_add_u32 v{vAOd}, {6 * 64}, v{vAOd}')


STAMP0 = 84


def gen_k2(opts):
    a = Asm()
    stamps = int(opts.get('stamps', 0))
    global HACK
    HACK = opts.get('hack', '')
    nst = [0]

    def stamp(cyc=None):
        if stamps:
            a(f's_memrealtime s[{STAMP0}:{STAMP0 + 1}]')
            if cyc is not None:
                a(f's_memtime s[{STAMP0 + 2}:{STAMP0 + 3}]')
            a('s_waitcnt lgkmcnt(0)')
            a(f'v_writelane_b32 v{vStamp}, s{STAMP0}, {nst[0]}')
            if cyc is not None:
                a(f'v_writelane_b32 v{vStamp}, s{STAMP0 + 2}, {cyc}')
            nst[0] += 1

    a(f's_cmp_ge_u32 s2, {K2_GRID}')
    a('s_cbranch_scc1 L_k2_exit')
    stamp()
    load_kernargs(a)
    a(f'v_and_b32 v{vLane}, 63, v0')
    a(f'v_lshrrev_b32 v{vT0}, 6, v0')
    a(f'v_readfirstlane_b32 s{sW}, v{vT0}')
    a(f'v_and_b32 v{vC}, 31, v{vLane}')
    a(f'v_lshrrev_b32 v{vHH}, 5, v{vLane}')
    a(f'v_mov_b32 v{vZero}, 0')
    a(f'v_mov_b32 v{vOne16}, 0x3f80')
    wg_to_group(a, 2, sG, sH)
    a(f's_lshr_b32 s11, s{sW}, 2')
    a(f's_lshl_b32 s12, s11, 1')
    a(f's_add_u32 s12, s12, s{sW}')
    a(f's_and_b32 s{sB4}, s12, 3')
    a(f's_lshl_b32 s{sQ}, s{sH}, 1')
    a(f's_add_u32 s{sQ}, s{sQ}, s11')
    a(f's_lshl_b32 s{sB}, s{sG}, 2')
    a(f's_add_u32 s{sB}, s{sB}, s{sB4}')
    a(f'v_and_b32 v{vL15}, 15, v{vLane}')
    a(f'v_lshrrev_b32 v{vT0}, 4, v{vLane}')
    a(f's_lshl_b32 s11, s{sW}, 4')
    a(f'v_add_u32 v{vT0}, s11, v{vT0}')
    a(f'v_mul_u32_u24 v{kCb}, {CH}, v{vT0}')
    a(f'v_lshlrev_b32 v{kDc}, 4, v{vT0}')
    a(f'v_lshlrev_b32 v{vPF}, 7, v{vT0}')
    a(f'v_lshl_add_u32 v{vPF}, v{vL15}, 2, v{vPF}')
    a(f'v_lshlrev_b32 v{vPF + 1}, 1, v{vT0}')
    a(f'v_lshlrev_b32 v{vEI}, 2, v{vLane}')
    dummy_fill(a)
    a(f's_lshl_b32 s{sOb}, s{sW}, 11')
    a(f's_add_u32 s{sOb}, s{sOb}, {L_O}')
    a(f'v_lshlrev_b32 v{vT0}, 5, v{vLane}')
    a(f'v_add_u32 v{vT0}, s{sOb}, v{vT0}')
    for i in range(4):
        a(f'v_mov_b32 v{HP + i}, 0')
    a(f'ds_write_b128 v{vT0}, {V(HP, 4)}')
    a(f'ds_write_b128 v{vT0}, {V(HP, 4)} offset:16')
    a(f's_lshl_b32 s12, s{sG}, 10')
    a(f's_add_u32 s12, s12, {WS_OFF}')
    a(f's_lshl_b32 s13, s{sB4}, 8')
    a('s_add_u32 s13, s13, s12')
    a(f's_mov_b32 s14, {WS_OFF + 513 * 256}')
    a(f's_lshl_b32 s15, s{sG}, 14')
    a(f's_add_u32 s15, s15, {WS_REC2}')
    a('s_waitcnt lgkmcnt(0)')
    shift_ws(a, opts)
    stamp()
    srd(a, sWS, S_WS, WS_END)
    a(f'buffer_load_dword v{vOFF}, v{vEI}, {S(sWS)}, s13 offen')
    a(f'buffer_load_dword v{vOFF + 1}, v{vEI}, {S(sWS)}, s13 offen offset:256')
    a(f'buffer_load_dword v{vOFF + 2}, v{vEI}, {S(sWS)}, s12 offen')
    a(f'buffer_load_dword v{vOFF + 3}, v{vEI}, {S(sWS)}, s14 offen')
    for k in range(4):
        a(f'buffer_load_ushort v{kS[k]}, v{vPF + 1}, {S(sWS)}, s12 offen offset:{8 * k}')
    for i in range(8):
        a(f'buffer_load_dword v{vRec[i]}, v{vPF}, {S(sWS)}, s15 offen offset:{512 * (i & 3) + 64 * (i >> 2)}')
    a('s_barrier')
    srd(a, sX, S_X, N * 256)
    a(f's_mul_i32 s11, s{sG}, 2500')
    a('s_add_u32 s11, s11, 31')
    a('s_lshr_b32 s11, s11, 5')
    a(f's_mul_i32 s12, s{sB}, 625')
    a('s_add_u32 s13, s12, 656')
    a('s_add_u32 s12, s12, 31')
    a(f's_lshr_b32 s{sNB0}, s12, 5')
    a('s_lshr_b32 s13, s13, 5')
    a(f's_sub_u32 s{sNBN}, s13, s{sNB0}')
    a(f's_sub_u32 s{sRo}, s{sNB0}, s11')
    a('s_lshl_b32 s11, s11, 8')
    a(f'v_lshrrev_b32 v{vT0 + 1}, 4, v{vLane}')
    a(f's_lshl_b32 s12, s{sW}, 2')
    a(f'v_add_u32 v{vT0 + 1}, s12, v{vT0 + 1}')
    a(f's_lshl_b32 s13, s{sW}, 10')
    a(f's_add_u32 s13, s13, {L_XR}')
    for j in range(3):
        a(f'v_add_u32 v{BP}, {32 * j}, v{vT0 + 1}')
        a(f'v_and_b32 v{BP + 1}, 15, v{BP}')
        a(f'v_xor_b32 v{BP + 1}, v{BP + 1}, v{vL15}')
        a(f'v_lshlrev_b32 v{BP}, 8, v{BP}')
        a(f'v_lshl_add_u32 v{BP}, v{BP + 1}, 4, v{BP}')
        a(f's_add_u32 m0, s13, {j * 8192}')
        a('s_nop 0')
        a(f'buffer_load_dwordx4 v{BP}, {S(sX)}, s11 offen lds')
    a(f'v_lshlrev_b32 v{vT0}, 4, v{vLane}')
    a(f's_mul_i32 s11, s{sH}, {2 * FRQ}')
    a(f's_add_u32 s11, s11, {WS_FR}')
    a(f's_lshl_b32 s12, s{sW}, 10')
    a('s_add_u32 s11, s11, s12')
    a(f's_add_u32 s12, s12, {L_FR}')
    for j in range(4):
        a(f's_add_u32 m0, s12, {j * 8192}')
        if j:
            a('s_add_u32 s11, s11, 8192')
        else:
            a('s_nop 0')
        a(f'buffer_load_dwordx4 v{vT0}, {S(sWS)}, s11 offen lds')
    NDMA = 3 + 4
    a(f's_cmp_ge_u32 s{sW}, 2')
    a('s_cbranch_scc1 L_no5')
    a(f's_add_u32 m0, s12, 32768')
    a('s_add_u32 s11, s11, 8192')
    a(f'buffer_load_dwordx4 v{vT0}, {S(sWS)}, s11 offen lds')
    a.label('L_no5')
    NPF = int(opts.get('prefetch', 0))
    if NPF:
        a(f's_mul_i32 s11, s{sH}, {2 * TQ}')
        a(f's_add_u32 s{sPF}, s{S_WS}, s11')
        a(f's_addc_u32 s{sPF + 1}, s{S_WS + 1}, 0')
        a(f's_mov_b32 s{sPF + 2}, {2 * TQ}')
        a(f's_mov_b32 s{sPF + 3}, {SRD3:#x}')
        a('s_lshr_b32 s11, s2, 3')
        a('s_lshl_b32 s11, s11, 3')
        a(f's_add_u32 s11, s11, s{sW}')
        a('s_lshl_b32 s11, s11, 7')
        a(f'v_lshlrev_b32 v{vT0}, 15, v{vLane}')
        a(f'buffer_load_dword v{vPF}, v{vT0}, {S(sPF)}, s11 offen')
        if NPF > 1:
            a(f's_add_u32 s11, s11, {64 << 15}')
            a(f'buffer_load_dword v{vPF + 1}, v{vT0}, {S(sPF)}, s11 offen')
    a(f's_lshl_b32 s{sRing}, s{sW}, 12')
    a(f's_add_u32 s{sRing}, s{sRing}, {L_RING}')
    r_, g2, c1, c0, row4, u, t_ = BP, BP + 1, BP + 2, BP + 3, BP + 4, BP + 5, BP + 6
    a(f'v_bfe_u32 v{r_}, v{vLane}, 2, 2')
    a(f'v_bfe_u32 v{g2}, v{vLane}, 4, 1')
    a(f'v_bfe_u32 v{c1}, v{vLane}, 1, 1')
    a(f'v_and_b32 v{c0}, 1, v{vLane}')
    a(f'v_lshl_add_u32 v{row4}, v{vHH}, 2, v{r_}')
    a(f'v_lshl_or_b32 v{u}, v{g2}, 1, v{c1}')
    a(f'v_lshrrev_b32 v{t_}, 1, v{r_}')
    a(f'v_lshlrev_b32 v{t_}, 2, v{t_}')
    a(f'v_xor_b32 v{t_}, v{t_}, v{u}')
    a(f'v_lshlrev_b32 v{t_}, 4, v{t_}')
    a(f'v_lshl_add_u32 v{t_}, v{row4}, 7, v{t_}')
    a(f'v_lshl_add_u32 v{t_}, v{c0}, 3, v{t_}')
    a(f'v_add_u32 v{vRB}, s{sRing}, v{t_}')
    a(f'v_xor_b32 v{vRH}, 64, v{vRB}')
    a(f'v_add_u32 v{vRB2}, 0x10000, v{vRB}')
    a(f'v_add_u32 v{vRH2}, 0x10000, v{vRH}')
    a(f'v_lshl_or_b32 v{u}, v{g2}, 1, v{c0}')
    a(f'v_xor_b32 v{t_}, v{u}, v{vHH}')
    a(f'v_lshlrev_b32 v{t_}, 4, v{t_}')
    a(f'v_lshl_add_u32 v{t_}, v{row4}, 6, v{t_}')
    a(f'v_lshl_add_u32 v{t_}, v{c1}, 3, v{t_}')
    a(f'v_add_u32 v{vOTa}, s{sOb}, v{t_}')
    a(f'v_xor_b32 v{vOTb}, 32, v{vOTa}')
    a(f'v_bfe_u32 v{t_}, v{vC}, 2, 2')
    a(f'v_lshlrev_b32 v{vOcX}, 4, v{t_}')
    a(f'v_lshl_add_u32 v{vOcC}, v{vC}, 6, s{sOb}')
    a(f'v_xor_b32 v{t_}, v{t_}, v{vHH}')
    a(f'v_lshl_add_u32 v{vO0a}, v{t_}, 4, v{vOcC}')
    a(f'v_xor_b32 v{vO1a}, 32, v{vO0a}')
    a(f'v_lshlrev_b32 v{t_}, 2, v{g2}')
    a(f'v_and_b32 v{u}, 7, v{vLane}')
    a(f'v_xor_b32 v{t_}, v{t_}, v{u}')
    a(f'v_lshlrev_b32 v{vIx + 1}, 4, v{t_}')
    for j in range(1, 4):
        a(f'v_mov_b32 v{vIx + 2 * j + 1}, v{vIx + 1}')
    a(f'v_lshlrev_b32 v{vEI + 1}, 4, v{vHH}')
    a(f's_mul_i32 s11, s{sQ}, {TQ}')
    a(f's_add_u32 s{sT}, s{S_WS}, s11')
    a(f's_addc_u32 s{sT + 1}, s{S_WS + 1}, 0')
    a(f's_or_b32 s{sT + 1}, s{sT + 1}, {128 << 16}')
    a(f's_mov_b32 s{sT + 2}, {N}')
    a(f's_mov_b32 s{sT + 3}, {SRD3:#x}')
    srd(a, sE, S_WS, E, off=WS_ES, stride=32)
    srd(a, sOut, S_OUT, N * 256)
    a(f's_movk_i32 s{sM512}, {-LS}')
    a(f's_movk_i32 s{sCAP}, {CAP}')
    a(f's_mov_b32 s{sRound}, 0')
    a(f's_lshr_b32 s11, s{sW}, 2')
    a(f's_mul_i32 s{sFr}, s11, {FRQ}')
    a(f's_add_u32 s{sFr}, s{sFr}, {L_FR}')
    list_addrs(a)
    REST = 4 + 8 + NDMA + NPF
    a(f's_waitcnt vmcnt({REST})')
    stamp()
    o0, o1, o2 = vOFF, vOFF + 1, vOFF + 2
    t = [OO + 4, OO + 5, OO + 6, OO + 7, vT0, vT0 + 1, vT0 + 2]
    a(f'v_cmp_ne_u32 vcc, 0, v{vOFF + 3}')
    a(f'v_and_b32 v{t[0]}, 0xffff, v{o0}')
    a(f'v_lshrrev_b32 v{t[1]}, 16, v{o0}')
    a(f's_cmp_lg_u64 vcc, 0')
    a(f's_cselect_b32 s{sSlow}, 1, 0')
    a(f'v_and_b32 v{t[2]}, 0xffff, v{o1}')
    a(f'v_lshrrev_b32 v{t[3]}, 16, v{o1}')
    a(f'v_sub_u32 v{t[2]}, v{t[2]}, v{t[0]}')
    a(f'v_sub_u32 v{t[3]}, v{t[3]}, v{t[1]}')
    a(f'v_add_u32 v{t[3]}, v{t[2]}, v{t[3]}')
    a(f'v_mov_b32 v{t[4]}, v{t[3]}')
    wave_scan_incl(a, t[4])
    a(f'v_readlane_b32 s{sCnt}, v{t[4]}, 63')
    a(f'v_sub_u32 v{t[4]}, v{t[4]}, v{t[3]}')
    a(f's_mul_i32 s11, s{sB4}, {LS}')
    a(f'v_add_u32 v{t[4]}, s11, v{t[4]}')
    a(f'v_and_b32 v{t[5]}, 0xffff, v{o2}')
    a(f'v_sub_u32 v{t[5]}, v{t[5]}, v{t[0]}')
    a(f'v_add_u32 v{kD0}, v{t[4]}, v{t[5]}')
    a(f'v_lshrrev_b32 v{t[5]}, 16, v{o2}')
    a(f'v_sub_u32 v{t[5]}, v{t[5]}, v{t[1]}')
    a(f'v_add3_u32 v{kD1}, v{t[4]}, v{t[2]}, v{t[5]}')
    a(f'v_lshlrev_b32 v{vT0}, 5, v{vLane}')
    a(f's_lshl_b32 s11, s{sB4}, 2')
    a(f'v_add_u32 v{vT0}, s11, v{vT0}')
    a(f'ds_write_b32 v{vT0}, v{kD0} offset:{L_DELTA}')
    a(f'ds_write_b32 v{vT0}, v{kD1} offset:{L_DELTA + 16}')
    a(f'v_mov_b32 v{vT0 + 1}, s{sCnt}')
    a(f'v_mov_b32 v{vT0 + 2}, s11')
    a(f'ds_write_b32 v{vT0 + 2}, v{vT0 + 1} offset:{L_CNT}')
    a(f's_waitcnt vmcnt({REST - 4})')
    a(f'v_add_u32 v{vT0}, v{kCb}, v{vL15}')
    for k in range(4):
        a(f'v_add_u32 v{vEi[k]}, v{kS[k]}, v{vT0}')
        if k:
            a(f'v_add_u32 v{vEi[k]}, {k * 4 * CH}, v{vEi[k]}')
        a(f'v_add_u32 v{vEi[4 + k]}, 16, v{vEi[k]}')
    a('s_waitcnt lgkmcnt(0)')
    a('s_barrier')
    stamp()
    a(f'ds_read_b128 {V(SS[0], 4)}, v{vZero} offset:{L_CNT}')
    a(f's_waitcnt vmcnt({NDMA + NPF})')
    a('s_waitcnt lgkmcnt(0)')
    a(f'v_max_u32 v{SS[0]}, v{SS[0]}, v{SS[0] + 1}')
    a(f'v_max3_u32 v{SS[0]}, v{SS[0]}, v{SS[0] + 2}, v{SS[0] + 3}')
    a(f'v_readfirstlane_b32 s11, v{SS[0]}')
    a(f's_cmp_gt_u32 s11, {CAP}')
    a(f's_cselect_b32 s{sSlow}, 1, s{sSlow}')
    a(f's_add_u32 s11, s11, {CAP - 1}')
    a(f's_mov_b32 s12, {(1 << 32) // CAP + 1}')
    a(f's_mul_hi_u32 s{sRounds}, s11, s12')
    a(f's_cmp_lg_u32 s{sSlow}, 0')
    a('s_cbranch_scc1 L_slow0')
    placement_fast(a)
    a.label('L_placed0')
    stamp()
    set_tiles(a)
    a(f's_waitcnt vmcnt({NPF}) lgkmcnt(0)')
    a('s_barrier')

    a.label('L_pipe')
    idx_reads(a, 0)
    oad_read(a, vOA[0], 0)
    oad_read(a, vOA[1], 1)
    a('s_waitcnt lgkmcnt(2)')
    a(dma(0, 0))
    idx_reads(a, 1)
    a(f's_cmp_lg_u32 s{sRound}, 0')
    a('s_cbranch_scc1 L_node_done')
    identity_operands(a)
    a(f'v_add_u32 v{vT0}, s{sRo}, v{vC}')
    a(f'v_and_b32 v{vT0 + 1}, 15, v{vT0}')
    a(f'v_xor_b32 v{vT0 + 1}, v{vT0 + 1}, v{vHH}')
    a(f'v_lshlrev_b32 v{vT0 + 1}, 4, v{vT0 + 1}')
    a(f'v_lshl_add_u32 v{vT0}, v{vT0}, 8, v{vT0 + 1}')
    a(f'v_add_u32 v{vT0}, {L_XR}, v{vT0}')
    a(f'v_lshl_add_u32 v{vT0 + 2}, v{vLane}, 4, s{sFr}')
    XA = [G[1] + 4 * i for i in range(4)] + [H[1] + 4 * i for i in range(4)]
    WA = [BP, BP + 4, HP, HP + 4]
    WU = [OO, OO + 4, SS[0], SS[0] + 4]
    a(f'ds_read_b128 {V(WC, 4)}, v{vT0 + 2} offset:16384')
    for s in range(8):
        a(f'v_xor_b32 v{vT0 + 1}, {s << 5}, v{vT0}')
        a(f'ds_read_b128 {V(XA[s], 4)}, v{vT0 + 1}')
        a(f'ds_read_b128 {V(WA[s & 3], 4)}, v{vT0 + 2} offset:{s * 1024}')
        a(f'ds_read_b128 {V(WU[s & 3], 4)}, v{vT0 + 2} offset:{8192 + s * 1024}')
        if s >= 2:
            k = s - 2
            a('s_waitcnt lgkmcnt(6)')
            a(mfma(G[0], XA[k], WA[k & 3], '0' if k == 0 else None))
            a(mfma(UU, WU[k & 3], XA[k], '0' if k == 0 else None))
    for k in (6, 7):
        a(f's_waitcnt lgkmcnt({3 * (7 - k)})')
        a(mfma(G[0], XA[k], WA[k & 3]))
        a(mfma(UU, WU[k & 3], XA[k]))
    for i in range(4):
        a(f'v_mov_b32 v{EP + 4 + i}, 0')
    a(mfma(DEN, EP + 4, EP + 4, '0'))
    a(mfma(NUM, EP + 4, EP + 4, '0'))
    for i in range(8):
        a(f'v_cvt_pk_bf16_f32 v{AP + i}, v{G[0] + 2 * i}, v{G[0] + 2 * i + 1}')
    a.label('L_node_done')
    a('s_waitcnt lgkmcnt(0)')
    a(dma(1, 1))
    idx_reads(a, 2)
    a('s_barrier')
    stamp()
    a(f's_cmp_eq_u32 s{sTiles}, 0')
    a('s_cbranch_scc1 L_round_end')
    allseg = opts.get('sched', 'A') != 'A'
    for i in range(0 if allseg else 4, 8):
        a(f'v_mov_b32 v{SS[1] + i}, 0')
        a(f'v_mov_b32 v{EP + i}, 0')
        a(f'v_mov_b32 v{MP + i}, 0')
    a(oad_fix(vOA[0]))
    a('s_waitcnt vmcnt(5)')
    a(operand_reads(0, 0, vOA[0]))
    for w, m in m1(0, 0):
        if w:
            a(f's_waitcnt {w}')
        a(m)
    stamp(13)
    a(f's_mov_b32 s{sLeft}, s{sTiles}')
    iteration(a, 0, opts, first=True)
    a(f's_sub_u32 s{sLeft}, s{sLeft}, 1')
    a(f's_cmp_eq_u32 s{sLeft}, 0')
    a('s_cbranch_scc1 L_exit0')
    a.label('L_loop')
    for n in range(1, 7):
        iteration(a, n, opts)
        a(f's_sub_u32 s{sLeft}, s{sLeft}, 1')
        if n < 6:
            a(f's_cmp_eq_u32 s{sLeft}, 0')
            a(f's_cbranch_scc1 L_exit{n & 1}')
        else:
            a(f's_cmp_lg_u32 s{sLeft}, 0')
            a('s_cbranch_scc1 L_loop')
    a('s_branch L_exit0')
    a.label('L_exit1')
    a('s_setprio 0')
    a('s_nop 1')
    if allseg:
        a(m2(1, 0))
    a(m2(1, 1))
    a('s_branch L_round_end')
    a.label('L_exit0')
    a('s_setprio 0')
    a('s_nop 1')
    if allseg:
        a(m2(0, 0))
    a(m2(0, 1))
    a.label('L_round_end')
    a(f's_add_u32 s{sRound}, s{sRound}, 1')
    a(f's_cmp_lt_u32 s{sRound}, s{sRounds}')
    a('s_cbranch_scc1 L_next_round')

    stamp(14)
    a(f'v_add_u32 v{vT0}, s{sRo}, v{vC}')
    a(f'v_and_b32 v{vT0 + 1}, 15, v{vT0}')
    a(f's_lshl_b32 s11, s{sQ}, 2')
    a(f'v_xor_b32 v{vT0 + 1}, s11, v{vT0 + 1}')
    a(f'v_lshlrev_b32 v{vT0 + 1}, 4, v{vT0 + 1}')
    a(f'v_lshl_add_u32 v{vT0}, v{vT0}, 8, v{vT0 + 1}')
    a(f'v_lshl_add_u32 v{vT0}, v{vHH}, 3, v{vT0}')
    a(f'v_add_u32 v{vT0}, {L_XR}, v{vT0}')
    for i in range(4):
        a(f'v_xor_b32 v{vT0 + 1}, {i << 4}, v{vT0}')
        a(f'ds_read_b64 {V(EP + 2 * i, 2)}, v{vT0 + 1}')
    a(f'v_cmp_gt_u32 vcc, s{sNBN}, v{vC}')
    a(f'v_add_u32 v{vT0}, s{sNB0}, v{vC}')
    a(f'v_lshlrev_b32 v{vT0}, 8, v{vT0}')
    a(f'v_lshl_add_u32 v{vT0}, v{vHH}, 4, v{vT0}')
    a(f's_lshl_b32 s11, s{sQ}, 6')
    a(f'v_add_u32 v{vT0}, s11, v{vT0}')
    a(f'v_bfrev_b32 v{vT0 + 1}, 1')
    a(f'v_cndmask_b32 v{vT0}, v{vT0 + 1}, v{vT0}, vcc')
    a(f's_mov_b32 s12, 0x358637bd')
    a(f's_mov_b32 s13, 0x358637bd')
    for i in range(8):
        a(f'v_pk_add_f32 {V(DEN + 2 * i, 2)}, {V(DEN + 2 * i, 2)}, s[12:13]')
    for i in range(16):
        a(f'v_rcp_f32 v{DEN + i}, v{DEN + i}')
    for i in range(8):
        a(f'v_pk_fma_f32 {V(NUM + 2 * i, 2)}, {V(NUM + 2 * i, 2)}, {V(DEN + 2 * i, 2)}, {V(UU + 2 * i, 2)}')
    for i in range(16):
        a(f'v_max_f32 v{NUM + i}, 0, v{NUM + i}')
    a('s_waitcnt lgkmcnt(0)')
    for i in range(8):
        a(f'v_lshlrev_b32 v{DEN + 2 * i}, 16, v{EP + i}')
        a(f'v_and_b32 v{DEN + 2 * i + 1}, 0xffff0000, v{EP + i}')
    for i in range(8):
        a(f'v_pk_add_f32 {V(NUM + 2 * i, 2)}, {V(NUM + 2 * i, 2)}, {V(DEN + 2 * i, 2)}')
    for i in range(8):
        a(f'v_cvt_pk_bf16_f32 v{MP + i}, v{NUM + 2 * i}, v{NUM + 2 * i + 1}')
    for p in range(2):
        a(f'v_permlane32_swap_b32 v{MP + 4 * p}, v{MP + 4 * p + 2}')
        a(f'v_permlane32_swap_b32 v{MP + 4 * p + 1}, v{MP + 4 * p + 3}')
    for p in range(2):
        a(f'buffer_store_dwordx4 {V(MP + 4 * p, 4)}, v{vT0}, {S(sOut)}, 0 offen offset:{32 * p}')
    if stamps:
        a('s_waitcnt vmcnt(0)')
        stamp()
        a(f'v_writelane_b32 v{vStamp}, s{sTiles}, 15')
        srd(a, sPF, S_WS, 1 << 20, off=32 << 20)
        a(f's_lshl_b32 s11, s2, 3')
        a(f's_add_u32 s11, s11, s{sW}')
        a('s_lshl_b32 s11, s11, 6')
        a(f'v_lshl_add_u32 v{vT0}, v{vLane}, 2, s11')
        a(f'v_cmp_gt_u32 vcc, 16, v{vLane}')
        a('s_mov_b64 exec, vcc')
        a(f'buffer_store_dword v{vStamp}, v{vT0}, {S(sPF)}, 0 offen')
    a('s_endpgm')

    a.label('L_slow0')
    load_seg_ends(a)
    general_round(a, 's')
    a('s_branch L_placed0')

    a.label('L_next_round')
    a('s_waitcnt vmcnt(0) lgkmcnt(0)')
    a('s_barrier')
    dummy_fill(a)
    a(f'v_subrev_u32 v{kD0}, {CAP}, v{kD0}')
    a(f'v_subrev_u32 v{kD1}, {CAP}, v{kD1}')
    a(f'v_lshlrev_b32 v{vT0}, 5, v{vLane}')
    a(f's_lshl_b32 s11, s{sB4}, 2')
    a(f'v_add_u32 v{vT0}, s11, v{vT0}')
    a(f'ds_write_b32 v{vT0}, v{kD0} offset:{L_DELTA}')
    a(f'ds_write_b32 v{vT0}, v{kD1} offset:{L_DELTA + 16}')
    a('s_waitcnt lgkmcnt(0)')
    a('s_barrier')
    general_round(a, 'r')
    a('s_waitcnt lgkmcnt(0)')
    a('s_barrier')
    set_tiles(a)
    list_addrs(a)
    a('s_branch L_pipe')
    a.label('L_k2_exit')
    a('s_endpgm')
    return a
```
